```python
import torch

def _softmax(x, axis=-1):
    return torch.softmax(x, dim=axis)
def _gelu(x):
    return torch.nn.functional.gelu(x, approximate="tanh")
def _silu(x):
    return torch.nn.functional.silu(x)
def _sigmoid(x):
    return torch.sigmoid(x)
def _layernorm(x, axis=-1, eps=1e-5):
    m = x.mean(dim=axis, keepdim=True)
    v = x.var(dim=axis, keepdim=True, unbiased=False)
    return (x - m) / torch.sqrt(v + eps)
def _scatter_add(tgt, idx, src, axis=0):
    return tgt.clone().index_add_(axis, idx, src)
def _segment_sum(src, seg, n):
    out = torch.zeros((n,) + src.shape[1:], dtype=src.dtype)
    return out.index_add_(0, seg, src)
def _pad(x, pw):
    flat = tuple(v for pair in reversed(pw) for v in pair)
    return torch.nn.functional.pad(x, flat)

kernel_name = 'sequential_preLN__sliding_block_cached__glu_gated_reglu__decode'

def setup_inputs():

    _w = (lambda a: (lambda t: t.to(torch.bfloat16) if t.is_floating_point() else t)(torch.as_tensor(a)))
    def _A_setup():
        B, Sq, D = 1, 1, 512
        Hq, Hkv, Sk, Dh = 32, 32, 32768, 128
        assert Hq % Hkv == 0, (Hq, Hkv)
        return {
            "x": _w((lambda *s: torch.randn(*s, dtype=torch.bfloat16) * 0.05)(B, Sq, D)),
            "k_cache": _w((lambda *s: torch.randn(*s, dtype=torch.bfloat16) * 1.6)(B, Hkv, Sk, Dh)),
            "v_cache": _w((lambda *s: torch.randn(*s, dtype=torch.bfloat16) * 0.8)(B, Hkv, Sk, Dh)),
            "wq": _w((lambda *s: torch.randn(*s, dtype=torch.bfloat16) * 1.6)(D, Hq * Dh) * (D ** -0.5)),
            "wo": _w((lambda *s: torch.randn(*s, dtype=torch.bfloat16) * 0.8)(Hq * Dh, D) * ((Hq * Dh) ** -0.5)),
        }
    _A_in = _A_setup()

    def _B_setup():
        B, S, D, F = 1, 1, 512, 1376
        return {
            "x": _w((lambda *s: torch.randn(*s, dtype=torch.bfloat16) * 0.05)(B, S, D)),
            "W_gate": _w((lambda *s: torch.randn(*s, dtype=torch.bfloat16) * 0.4)(D, F) * (2.0 / D) ** 0.5),
            "W_up": _w((lambda *s: torch.randn(*s, dtype=torch.bfloat16) * 0.4)(D, F) * (2.0 / D) ** 0.5),
            "W_down": _w((lambda *s: torch.randn(*s, dtype=torch.bfloat16) * 0.4)(F, D) * (1.0 / F) ** 0.5),
        }
    _B_in = _B_setup()

    return {
        "A_x": _A_in["x"],
        "A_k_cache": _A_in["k_cache"],
        "A_v_cache": _A_in["v_cache"],
        "A_wq": _A_in["wq"],
        "A_wo": _A_in["wo"],
        "B_x": _B_in["x"],
        "B_W_gate": _B_in["W_gate"],
        "B_W_up": _B_in["W_up"],
        "B_W_down": _B_in["W_down"],
    }

def reference(A_x, A_k_cache, A_v_cache, A_wq, A_wo, B_x, B_W_gate, B_W_up, B_W_down):
    def _A_ref(x, k_cache, v_cache, wq, wo):
        B, Sq, D = x.shape
        Hq, Dh = 32, 128
        Hkv, Sk = k_cache.shape[1], k_cache.shape[2]
        W = min(4096, max(256, Sk // 4))
        rep = Hq // Hkv
        q = (lambda x, *d: x.permute(*d))((x @ wq).reshape(B, Sq, Hq, Dh), 0, 2, 1, 3)
        k = (lambda x, n, axis: torch.repeat_interleave(x, n, dim=axis))(k_cache[:, :, Sk - W:, :], rep, axis=1)
        v = (lambda x, n, axis: torch.repeat_interleave(x, n, dim=axis))(v_cache[:, :, Sk - W:, :], rep, axis=1)
        scores = torch.einsum("bhqd,bhkd->bhqk", q, k) * (Dh ** -0.5)
        p = _softmax(scores, axis=-1)
        o = torch.einsum("bhqk,bhkd->bhqd", p, v)
        return (lambda x, *d: x.permute(*d))(o, 0, 2, 1, 3).reshape(B, Sq, Hq * Dh) @ wo

    def _B_ref(x, W_gate, W_up, W_down):
        gate = torch.einsum("bsd,df->bsf", x, W_gate)
        up = torch.einsum("bsd,df->bsf", x, W_up)
        gate = gate * (lambda x, dt: x.to(dt))(gate > 0, gate.dtype)
        h = gate * up
        return torch.einsum("bsf,fd->bsd", h, W_down)

    x = A_x
    h = x + _A_ref(_layernorm(x, axis=-1), A_k_cache, A_v_cache, A_wq, A_wo)
    h2 = h + _B_ref(_layernorm(h, axis=-1), B_W_gate, B_W_up, B_W_down)
    return h2
```

```python
import sys, json
KN = "sequential_preLN__sliding_block_cached__glu_gated_reglu__decode_kernel"
DEF = dict(stamps=0, nt=1, ntw=1, wpos_b="early", wpos_c="late", k_first=8, warm=1, ntq=0, sleep=0)

REG_A, REC = 0, 640
REG_B, REG_C, DIAG = 0x30000, 0x38000, 0x80000
L_Q, L_ML, L_O, L_Y, L_H = 0, 4096, 4352, 8448, 12544
KR, VR, WQ = 32, 96, 160
W1, W2 = 160, 192
BQ = 224
MASK = 240
ACC = 244
FULL = "row_mask:0xf bank_mask:0xf"

def gen(**kw):
    o = dict(DEF); o.update(kw)
    L = []
    def A(s):
        for x in s.split("\n"):
            x = x.strip()
            if x: L.append(x if x.endswith(":") else "    " + x)
    nt = " nt" if o["nt"] else ""
    ntw = " nt" if o["ntw"] else ""
    ntq = " nt" if o["ntq"] else ""
    vm = []
    def issue(tag, s): vm.append(tag); A(s)
    def wait(tag):
        n = len(vm) - 1 - max(i for i, t in enumerate(vm) if t == tag)
        A(f"s_waitcnt vmcnt({n})")
    def stamp(i):
        if o["stamps"]: A(f"s_memrealtime s[{60+2*i}:{61+2*i}]")
    npad = [0]
    def pad():
        if o["warm"]:
            A(f"PAD{npad[0]}:\ns_cbranch_execz WARM_RET"); npad[0] += 1
    def r4(b): return f"v[{b}:{b+3}]"
    def r2(b): return f"v[{b}:{b+1}]"
    def rows_allreduce(op, x, t):
        A(f"v_mov_b32 v{t}, v{x}\ns_nop 1\nv_permlane16_swap_b32 v{t}, v{x}\n{op} v{x}, v{x}, v{t}")
        A(f"v_mov_b32 v{t}, v{x}\ns_nop 1\nv_permlane32_swap_b32 v{t}, v{x}\n{op} v{x}, v{x}, v{t}")
    def wave_allreduce(op, x, t, rors=(8, 4, 2, 1)):
        for r in rors:
            A(f"s_nop 1\n{op}_dpp v{x}, v{x}, v{x} row_ror:{r} {FULL}")
        rows_allreduce(op, x, t)
    def bf16r(x):
        A(f"v_cvt_pk_bf16_f32 v{x}, v{x}, v{x}\nv_and_b32 v{x}, 0xffff0000, v{x}")
    def layernorm(xs, own, t0):
        s, t, m = t0, t0 + 1, t0 + 2
        A(f"v_add_f32 v{s}, v{xs}, v{xs+1}\nv_add_f32 v{t}, v{xs+2}, v{xs+3}\nv_add_f32 v{m}, v{xs+4}, v{xs+5}")
        A(f"v_add_f32 v{s}, v{s}, v{t}\nv_add_f32 v{t}, v{xs+6}, v{xs+7}\nv_add_f32 v{m}, v{m}, v{t}\nv_add_f32 v{m}, v{m}, v{s}")
        wave_allreduce("v_add_f32", m, t)
        A(f"v_mul_f32 v{m}, 0x3b000000, v{m}")
        for i in range(8): A(f"v_sub_f32 v{xs+i}, v{xs+i}, v{m}")
        A(f"v_mul_f32 v{s}, v{xs}, v{xs}\nv_mul_f32 v{t}, v{xs+1}, v{xs+1}")
        for i in range(2, 8): A(f"v_fmac_f32 v{(s, t)[i & 1]}, v{xs+i}, v{xs+i}")
        A(f"v_add_f32 v{s}, v{s}, v{t}")
        bf16r(m)
        A(f"v_sub_f32 v{own}, v{own}, v{m}")
        bf16r(own)
        wave_allreduce("v_add_f32", s, t)
        A(f"v_mul_f32 v{s}, 0x3b000000, v{s}")
        bf16r(s)
        A(f"v_add_f32 v{s}, 0x3727c5ac, v{s}")
        bf16r(s)
        A(f"v_sqrt_f32 v{s}, v{s}\ns_nop 0")
        bf16r(s)
        A(f"v_rcp_f32 v{s}, v{s}\ns_nop 0\nv_mul_f32 v{own}, v{own}, v{s}\nv_cvt_pk_bf16_f32 v{own}, v{own}, v{own}")
    def matvec8(src, wbase, n, lo, hi, ta, tb):
        A("s_nop 1")
        for t in range(n): A(f"v_mov_b32_dpp v{tb+t}, v{src} row_newbcast:{lo(t)} row_mask:0xf bank_mask:0x3")
        for t in range(n): A(f"v_mov_b32_dpp v{tb+t}, v{src} row_newbcast:{hi(t)} row_mask:0xf bank_mask:0xc")
        for t in range(n + 1):
            if t < n:
                for r in range(4): A(f"v_and_b32 v{ta + 4*(t&1) + r}, v{tb+t}, v{MASK+r}")
            else:
                A("s_nop 0")
            if t > 0:
                c = "0" if t == 1 else r4(ACC)
                A(f"v_mfma_f32_16x16x32_bf16 {r4(ACC)}, {r4(ta + 4*((t-1)&1))}, {r4(wbase + 4*(t-1))}, {c}")
    def reduce16(dst, t0):
        for k in range(4): A(f"ds_read_b128 {r4(t0+4*k)}, v28 offset:{256*k}")
        A("s_waitcnt lgkmcnt(2)")
        A(f"v_pk_add_f32 {r2(t0)}, {r2(t0)}, {r2(t0+4)}\nv_pk_add_f32 {r2(t0+2)}, {r2(t0+2)}, {r2(t0+6)}")
        A("s_waitcnt lgkmcnt(0)")
        A(f"v_pk_add_f32 {r2(t0+8)}, {r2(t0+8)}, {r2(t0+12)}\nv_pk_add_f32 {r2(t0+10)}, {r2(t0+10)}, {r2(t0+14)}")
        A(f"v_pk_add_f32 {r2(t0)}, {r2(t0)}, {r2(t0+8)}\nv_pk_add_f32 {r2(t0+2)}, {r2(t0+2)}, {r2(t0+10)}")
        scatter4(dst, t0)
    def scatter4(dst, t0):
        A(f"s_nop 1\nv_permlane32_swap_b32 v{t0}, v{t0+2}\nv_permlane32_swap_b32 v{t0+1}, v{t0+3}")
        A(f"v_add_f32 v{t0}, v{t0}, v{t0+2}\nv_add_f32 v{t0+1}, v{t0+1}, v{t0+3}")
        A(f"s_nop 1\nv_permlane16_swap_b32 v{t0}, v{t0+1}\nv_add_f32 v{dst}, v{t0}, v{t0+1}")
    def poll(name, loads, regs, t):
        A(f"{name}:")
        for s in loads: A(s)
        A("s_add_u32 s41, s41, 1\ns_cmp_gt_u32 s41, 0x40000\ns_cbranch_scc1 DONE")
        A("s_waitcnt vmcnt(0)")
        rs = list(regs)
        A(f"v_max3_u32 v{t}, v{rs[0]}, v{rs[1]}, v{rs[2 % len(rs)]}")
        rs = rs[3:]
        while rs:
            A(f"v_max3_u32 v{t}, v{t}, v{rs[0]}, v{rs[1 % len(rs)]}"); rs = rs[2:]
        A(f"v_cmp_eq_u32 vcc, -1, v{t}\ns_cbranch_vccnz {name}")
    def clean(x): A(f"v_min_u32 v{x}, -2, v{x}")
    def loads_b():
        for t in range(8): A(f"global_load_dwordx4 {r4(W1+4*t)}, v6, s[12:13] offset:{1024*t-4096}{ntw}")
    def loads_c():
        for t in range(8):
            A(f"global_load_dwordx4 {r4(W1+4*t)}, v[6:7], off{ntw}")
            if t < 7: A("v_lshl_add_u64 v[6:7], v[6:7], 0, s[44:45]")
        for t in range(4):
            A(f"global_load_dwordx4 {r4(W2+4*t)}, v{8 + (t >> 1)}, s[20:21] offset:{4096*(t&1)-4096}{ntw}")
    def role_loads(pos):
        if o["wpos_b"] == pos:
            A(f"s_cmp_lg_u32 s34, 1\ns_cbranch_scc1 SKIPB_{pos}"); loads_b(); A(f"SKIPB_{pos}:")
        if o["wpos_c"] == pos:
            A(f"s_cmp_lg_u32 s34, 2\ns_cbranch_scc1 SKIPC_{pos}"); loads_c(); A(f"SKIPC_{pos}:")

    hdr = open("cdna_kernels/" + KN[:-7] + ".s.ref").read().split("; Override launch")[0]
    L.append(hdr + "; @launch grid=(256,1,1) block=(512,1,1) lds=16384")
    L.append(f'.amdgcn_target "amdgcn-amd-amdhsa--gfx950"\n.text\n.globl {KN}\n.p2align 8\n.type {KN},@function\n{KN}:')
    stamp(0)
    A("""
    s_load_dwordx8 s[4:11], s[0:1], 0
    s_load_dwordx16 s[12:27], s[0:1], 32
    s_cmp_ge_u32 s2, 256
    s_cbranch_scc1 EXIT
    s_and_b32 s28, s2, 7
    s_lshr_b32 s29, s2, 3
    s_lshr_b32 s33, s29, 3
    s_lshl2_add_u32 s30, s28, s33
    s_and_b32 s31, s29, 7
    v_lshrrev_b32 v1, 6, v0
    v_and_b32 v0, 63, v0
    v_readfirstlane_b32 s32, v1
    v_lshrrev_b32 v10, 4, v0
    v_and_b32 v11, 15, v0
    v_lshlrev_b32 v12, 4, v0
    v_lshlrev_b32 v13, 19, v1
    v_lshl_add_u32 v13, v10, 13, v13
    v_lshl_add_u32 v13, v11, 4, v13
    s_lshl_b32 s33, s31, 1
    v_add_u32 v14, s33, v11
    v_and_b32 v14, 15, v14
    v_lshl_add_u32 v14, v14, 2, v10
    v_lshl_add_u32 v14, v1, 6, v14
    v_lshlrev_b32 v14, 1, v14
    s_lshl_b32 s40, s31, 16
    v_lshlrev_b32 v4, 14, v1
    v_add_u32 v4, 0x1000, v4
    v_bfe_u32 v2, v0, 2, 2
    v_lshl_add_u32 v2, v2, 8, v4
    v_lshl_add_u32 v2, v10, 6, v2
    v_and_b32 v3, 3, v0
    v_lshl_add_u32 v2, v3, 4, v2
    v_add_u32 v3, 0x2000, v2
    v_add_u32 v4, v12, v4
    v_add_u32 v5, 0x2000, v4
    s_lshl_b32 s42, s30, 23
    s_lshl_b32 s43, s31, 17
    s_add_u32 s42, s42, s43
    s_add_u32 s42, s42, 0x700000
    s_lshl_b32 s33, s30, 8
    s_mov_b32 s38, 0x400000
    s_mov_b32 s39, 0x20000
    s_sub_u32 s38, s38, s33
    s_mov_b32 s41, 0
    s_waitcnt lgkmcnt(0)
    s_add_u32 s36, s10, s33
    s_addc_u32 s37, s11, 0
    """)
    issue("xa", "global_load_dwordx4 v[16:19], v12, s[4:5]")
    issue("xb", "global_load_short_d16_hi v15, v14, s[4:5]")
    A("s_add_u32 s6, s6, s42\ns_addc_u32 s7, s7, 0\ns_add_u32 s8, s8, s42\ns_addc_u32 s9, s9, 0")
    def ldq(j):
        issue(f"q{j}", f"buffer_load_dwordx4 {r4(WQ+4*j)}, v13, s[36:39], s40 offen{ntq}")
        if j < 15: A("s_add_u32 s40, s40, 0x8000\ns_and_b32 s40, s40, 0x7ffff")
    def ldk(j): issue(f"k{j}", f"global_load_dwordx4 {r4(KR+4*j)}, v{2+(j>>3)}, s[6:7] offset:{1024*(j&7)-4096}{nt}")
    def ldv(j):
        if j == 15: issue("cnt", "v_and_b32 v22, 28, v25\nglobal_load_dword v23, v22, s[24:25] sc1")
        issue(f"v{j}", f"global_load_dwordx4 {r4(VR+4*j)}, v{4+(j>>3)}, s[8:9] offset:{1024*(j&7)-4096}{nt}")
    kf = o["k_first"]
    ldq(0); ldq(1)
    kq = 0
    for j in range(2, 16):
        if kq < kf: ldk(kq); kq += 1
        ldq(j)
    while kq < kf: ldk(kq); kq += 1
    stamp(1)
    A(f"""
    s_mov_b32 s34, 0
    s_mov_b32 s35, s29
    s_cmp_lt_u32 s29, 8
    s_cselect_b32 s34, 1, s34
    s_sub_u32 s33, s2, 64
    s_cmp_lt_u32 s33, 43
    s_cselect_b32 s34, 2, s34
    s_cselect_b32 s35, s33, s35
    s_sub_u32 s33, s2, 128
    s_cmp_lt_u32 s33, 32
    s_cselect_b32 s34, 3, s34
    s_cselect_b32 s35, s33, s35
    s_mov_b32 s44, {4*2752}
    s_mov_b32 s45, 0
    v_and_b32 v20, 1, v0
    v_lshlrev_b32 v20, 4, v20
    v_mov_b32 v21, 0xffff
    v_lshlrev_b32 v20, v20, v21
    v_bfe_u32 v21, v0, 1, 2
    """)
    for r in range(4):
        A(f"v_cmp_eq_u32 vcc, {r}, v21\ns_nop 1\nv_cndmask_b32 v{MASK+r}, 0, v20, vcc")
    A(f"""
    v_lshrrev_b32 v20, 3, v0
    v_and_b32 v21, 7, v0
    v_and_b32 v22, 1, v20
    s_lshl_b32 s33, s30, 3
    s_add_u32 s33, s33, s31
    s_mul_i32 s46, s33, {REC}
    v_add_u32 v24, s46, v12
    v_lshlrev_b32 v25, 2, v0
    v_lshlrev_b32 v26, 9, v1
    v_lshl_add_u32 v26, v11, 5, v26
    v_lshl_add_u32 v26, v10, 4, v26
    v_lshl_add_u32 v27, v1, 1, v22
    v_lshlrev_b32 v27, 8, v27
    v_lshl_add_u32 v27, v21, 5, v27
    v_and_b32 v23, 1, v10
    v_lshl_add_u32 v27, v23, 4, v27
    v_lshlrev_b32 v28, 10, v10
    v_lshl_add_u32 v28, v11, 4, v28
    v_add_u32 v28, {L_Y}, v28
    v_mov_b32 v6, 0
    v_mov_b32 v7, 0
    v_mov_b32 v8, 0
    v_mov_b32 v9, 0
    v_mov_b32 v29, 0
    v_mov_b32 v30, 0
    v_mov_b32 v31, 0
    v_mov_b32 v248, -1
    v_mov_b32 v249, -1
    v_mov_b32 v250, -1
    v_mov_b32 v251, -1
    s_cmp_eq_u32 s34, 2
    s_cbranch_scc1 ADDR_C
    s_cmp_eq_u32 s34, 3
    s_cbranch_scc1 ADDR_D
    s_lshl_b32 s33, s28, 19
    s_lshl_b32 s42, s35, 7
    s_add_u32 s33, s33, s42
    s_add_u32 s33, s33, 0x1000
    v_lshlrev_b32 v6, 16, v1
    v_lshl_add_u32 v6, v20, 13, v6
    v_lshl_add_u32 v6, v21, 4, v6
    v_add_u32 v6, s33, v6
    s_lshr_b32 s33, s32, 1
    s_lshl2_add_u32 s33, s28, s33
    s_mul_i32 s33, s33, {8*REC}
    v_mul_u32_u24 v30, {REC}, v21
    v_add_u32 v30, s33, v30
    s_and_b32 s42, s32, 1
    s_lshl_b32 s42, s42, 8
    s_add_u32 s33, s33, s42
    s_add_u32 s33, s33, {4*REC}
    v_add_u32 v29, s33, v25
    s_lshl3_add_u32 s33, s28, s35
    s_lshl_b32 s33, s33, 8
    s_add_u32 s33, s33, {REG_B}
    v_add_u32 v31, s33, v25
    s_cmp_lg_u32 s34, 1
    s_cbranch_scc1 ADDR_DONE
    s_cmp_lg_u32 s32, 0
    s_cbranch_scc1 ADDR_DONE
    global_store_dword v31, v248, s[26:27] sc1
    s_branch ADDR_DONE
    ADDR_C:
    v_lshl_add_u32 v6, v22, 5, v10
    v_lshl_add_u32 v6, v1, 6, v6
    v_mul_u32_u24 v6, 2752, v6
    v_and_b32 v7, 3, v0
    v_lshl_add_u32 v6, v7, 4, v6
    s_lshl_b32 s33, s35, 6
    v_add_u32 v6, s33, v6
    v_mov_b32 v7, 0
    v_cmp_gt_u32 vcc, 4, v21
    v_mov_b32 v8, s16
    v_mov_b32 v9, s17
    v_mov_b32 v29, s18
    v_mov_b32 v30, s19
    v_cndmask_b32 v8, v29, v8, vcc
    v_cndmask_b32 v9, v30, v9, vcc
    v_lshl_add_u64 v[6:7], v[6:7], 0, v[8:9]
    v_lshl_add_u32 v8, v22, 4, v10
    v_lshlrev_b32 v8, 10, v8
    v_lshl_add_u32 v8, v1, 7, v8
    v_lshl_add_u32 v8, v21, 4, v8
    s_lshl_b32 s33, s35, 15
    s_add_u32 s33, s33, 0x1000
    v_add_u32 v8, s33, v8
    v_add_u32 v9, 0x2000, v8
    v_lshl_add_u32 v29, v1, 8, v25
    v_add_u32 v29, {REG_B + 4096}, v29
    v_lshl_add_u32 v30, v11, 2, v10
    v_lshl_add_u32 v30, v1, 6, v30
    v_lshlrev_b32 v30, 1, v30
    s_lshl_b32 s33, s35, 11
    s_add_u32 s33, s33, {REG_C}
    v_lshlrev_b32 v31, 8, v1
    v_lshl_add_u32 v31, v21, 5, v31
    v_lshl_add_u32 v31, v23, 4, v31
    v_lshrrev_b32 v20, 5, v0
    v_lshl_add_u32 v31, v20, 3, v31
    v_add_u32 v31, s33, v31
    s_cmp_lg_u32 s32, 0
    s_cbranch_scc1 ADDR_DONE
    v_add_u32 v20, s33, v12
    global_store_dwordx4 v20, v[248:251], s[26:27] sc1
    global_store_dwordx4 v20, v[248:251], s[26:27] offset:1024 sc1
    s_branch ADDR_DONE
    ADDR_D:
    v_and_b32 v20, 3, v0
    v_lshrrev_b32 v6, 2, v0
    v_lshlrev_b32 v6, 11, v6
    v_lshl_add_u32 v6, v20, 4, v6
    s_lshl_b32 s33, s35, 6
    s_add_u32 s33, s33, {REG_C}
    v_add_u32 v6, s33, v6
    v_add_u32 v7, 0x8000, v6
    v_add_u32 v8, 0x10000, v6
    s_and_b32 s33, s35, 3
    s_lshl_b32 s33, s33, 2
    v_lshl_add_u32 v29, v10, 4, v20
    v_add_u32 v29, s33, v29
    v_lshlrev_b32 v29, 2, v29
    s_lshr_b32 s33, s35, 2
    s_lshl_b32 s33, s33, 8
    s_add_u32 s33, s33, {REG_B + 4096}
    v_add_u32 v29, s33, v29
    v_lshl_add_u32 v30, v20, 2, v10
    v_lshlrev_b32 v30, 1, v30
    s_lshl_b32 s33, s35, 5
    v_add_u32 v30, s33, v30
    ADDR_DONE:
    s_cmp_lg_u32 s32, 0
    s_cbranch_scc1 POISON_DONE
    s_mov_b32 exec_hi, 0xff
    global_store_dwordx4 v24, v[248:251], s[26:27] sc1
    s_mov_b32 exec_hi, -1
    POISON_DONE:
    """)
    vm.append("poison")
    A("global_load_dword v23, v12, s[4:5]")
    if o["warm"]:
        A("s_mov_b64 exec, 0\n@WARMTREE@\nWARM_RET:\ns_mov_b64 exec, -1")
    wait("xb")
    stamp(2)
    for i in range(4):
        A(f"v_lshlrev_b32 v{BQ+2*i}, 16, v{16+i}\nv_and_b32 v{BQ+2*i+1}, 0xffff0000, v{16+i}")
    A("v_and_b32 v15, 0xffff0000, v15")
    layernorm(BQ, 15, BQ + 8)
    A("s_nop 1")
    pad()
    for j in range(17):
        if j < 16:
            for r in range(4):
                A(f"v_and_b32_dpp v{BQ+4*(j&1)+r}, v15, v{MASK+r} row_newbcast:{j} {FULL}")
        else: A("s_nop 1")
        if j > 0:
            wait(f"q{j-1}")
            c = "0" if j == 1 else r4(ACC)
            A(f"v_mfma_f32_16x16x32_bf16 {r4(ACC)}, {r4(BQ+4*((j-1)&1))}, {r4(WQ+4*(j-1))}, {c}")
            if kq < 16 and o.get("k_inter", 1): ldk(kq); kq += 1
    while kq < 16: ldk(kq); kq += 1
    A(f"s_nop 7\ns_mov_b32 exec_hi, 0\nds_write_b128 v26, {r4(ACC)} offset:{L_Q}\ns_mov_b32 exec_hi, -1")
    role_loads("early")
    vq = 0
    for _ in range(o.get("v_first", 4)): ldv(vq); vq += 1
    A("s_cmp_lg_u32 s32, 0\ns_cbranch_scc1 NO_ARRIVE")
    wait("poison")
    A("v_mov_b32 v20, 1\ns_lshl_b32 s33, s28, 2\nv_mov_b32 v21, s33\ns_mov_b64 exec, 1\nglobal_atomic_add v21, v20, s[24:25] sc1\ns_mov_b64 exec, -1\nNO_ARRIVE:")
    A(f"""
    v_bfe_u32 v21, v0, 2, 2
    v_and_b32 v20, 3, v0
    v_lshl_add_u32 v20, v10, 2, v20
    v_lshlrev_b32 v20, 5, v20
    v_lshl_add_u32 v20, v21, 10, v20
    s_waitcnt lgkmcnt(0)
    s_barrier
    """)
    stamp(3)
    pad()
    for k in range(4): A(f"ds_read_b128 {r4(BQ+4*k)}, v20 offset:{L_Q + 512*(k>>1) + 16*(k&1)}")
    A("s_waitcnt lgkmcnt(0)")
    for i in range(0, 8, 2): A(f"v_pk_add_f32 {r2(BQ+i)}, {r2(BQ+i)}, {r2(BQ+8+i)}")
    for r in (4, 8):
        for i in range(8): A(f"v_add_f32_dpp v{BQ+i}, v{BQ+i}, v{BQ+i} row_ror:{r} {FULL}")
    for i in range(4): A(f"v_cvt_pk_bf16_f32 v{16+i}, v{BQ+2*i}, v{BQ+2*i+1}")
    for jj in range(4):
        A(f"v_cmp_eq_u32 vcc, {jj}, v21\ns_nop 1")
        for r in range(4): A(f"v_cndmask_b32 v{BQ+4*jj+r}, 0, v{16+r}, vcc")
    A("s_nop 1")
    DS = [16, 248, 252, ACC]
    for t in range(4):
        for jj in range(4):
            wait(f"k{4*t+jj}")
            c = "0" if jj == 0 else r4(DS[t])
            A(f"v_mfma_f32_16x16x32_bf16 {r4(DS[t])}, {r4(KR+16*t+4*jj)}, {r4(BQ+4*jj)}, {c}")
            if vq < 16: ldv(vq); vq += 1
    while vq < 16: ldv(vq); vq += 1
    stamp(4)
    role_loads("afterv")
    A("s_nop 7")
    S = BQ
    for r in range(4):
        for t in range(4):
            if r == 0: A(f"v_mov_b32_dpp v{S+t}, v{DS[t]} quad_perm:[0,0,0,0] {FULL}")
            else: A(f"v_add_f32_dpp v{S+t}, v{DS[t]+r}, v{S+t} quad_perm:[{r},{r},{r},{r}] {FULL}")
    for t in range(4):
        bf16r(S + t); A(f"v_mul_f32 v{S+t}, 0x3db504f3, v{S+t}"); bf16r(S + t)
    pad()
    A(f"v_max3_f32 v16, v{S}, v{S+1}, v{S+2}\nv_max_f32 v16, v16, v{S+3}")
    wave_allreduce("v_max_f32", 16, 18, (8, 4))
    for t in range(4): A(f"v_sub_f32 v{S+t}, v{S+t}, v16\nv_mul_f32 v{S+t}, 0x3fb8aa3b, v{S+t}\nv_exp_f32 v{S+t}, v{S+t}")
    A(f"s_nop 0\nv_add_f32 v17, v{S}, v{S+1}\nv_add_f32 v18, v{S+2}, v{S+3}\nv_add_f32 v17, v17, v18")
    wave_allreduce("v_add_f32", 17, 18, (8, 4))
    A(f"""
    v_lshlrev_b32 v20, 3, v1
    v_and_b32 v21, 7, v0
    v_lshlrev_b32 v21, 3, v21
    s_mov_b64 exec, 1
    ds_write_b64 v20, v[16:17] offset:{L_ML}
    s_mov_b64 exec, -1
    s_waitcnt lgkmcnt(0)
    s_barrier
    ds_read_b64 v[18:19], v21 offset:{L_ML}
    s_waitcnt lgkmcnt(0)
    v_max_f32_dpp v20, v18, v18 row_half_mirror {FULL}
    s_nop 1
    v_max_f32_dpp v20, v20, v20 quad_perm:[1,0,3,2] {FULL}
    s_nop 1
    v_max_f32_dpp v20, v20, v20 quad_perm:[2,3,0,1] {FULL}
    v_sub_f32 v16, v16, v20
    v_sub_f32 v18, v18, v20
    v_mul_f32 v16, 0x3fb8aa3b, v16
    v_mul_f32 v18, 0x3fb8aa3b, v18
    v_exp_f32 v16, v16
    v_exp_f32 v18, v18
    s_nop 0
    v_mul_f32 v21, v18, v19
    """)
    for t in range(4): A(f"v_mul_f32 v{S+t}, v{S+t}, v16\nv_cvt_pk_bf16_f32 v{S+t}, v{S+t}, v{S+t}")
    A(f"""
    v_add_f32_dpp v21, v21, v21 row_half_mirror {FULL}
    s_nop 1
    v_add_f32_dpp v21, v21, v21 quad_perm:[1,0,3,2] {FULL}
    s_nop 1
    v_add_f32_dpp v21, v21, v21 quad_perm:[2,3,0,1] {FULL}
    v_min_u32 v20, -2, v20
    v_min_u32 v21, -2, v21
    s_mov_b64 exec, 1
    global_store_dwordx2 v24, v[20:21], s[26:27] offset:512 sc1
    s_mov_b64 exec, -1
    """)
    vm.append("ml")
    stamp(5)
    pad()
    for j in range(16):
        for r in range(4):
            A(f"v_and_b32_dpp v{KR+4*j+r}, v{S+(j>>2)}, v{MASK+r} row_newbcast:{4*(j&3)} {FULL}")
    A("s_nop 0")
    pad()
    def pv(extra):
        for j in range(16):
            n = len(vm) - 1 - vm.index(f"v{j}") + extra
            c = "0" if j == 0 else r4(ACC)
            A(f"s_waitcnt vmcnt({n})\nv_mfma_f32_16x16x32_bf16 {r4(ACC)}, {r4(KR+4*j)}, {r4(VR+4*j)}, {c}")
    var = [(r, n) for r, n, p in ((1, 8, o["wpos_b"]), (2, 12, o["wpos_c"])) if p == "afterv"]
    for r, n in var:
        A(f"s_cmp_lg_u32 s34, {r}\ns_cbranch_scc1 PV_NOT{r}"); pv(n); A(f"s_branch PV_DONE\nPV_NOT{r}:")
    pv(0)
    A("PV_DONE:")
    stamp(6)
    A(f"s_nop 6\ns_mov_b32 exec_hi, 0\nds_write_b128 v26, {r4(ACC)} offset:{L_O}\ns_waitcnt lgkmcnt(0)\ns_barrier")
    A("s_cmp_lg_u32 s32, 0\ns_cbranch_scc1 NO_PUB")
    for k in range(8): A(f"ds_read_b128 {r4(KR+4*k)}, v12 offset:{L_O + 512*k}")
    for k in range(0, 8, 2):
        A(f"s_waitcnt lgkmcnt({6-k})")
        for i in (0, 2): A(f"v_pk_add_f32 {r2(KR+4*k+i)}, {r2(KR+4*k+i)}, {r2(KR+4*k+4+i)}")
    for a, b in ((0, 8), (16, 24), (0, 16)):
        for i in (0, 2): A(f"v_pk_add_f32 {r2(KR+a+i)}, {r2(KR+a+i)}, {r2(KR+b+i)}")
    for i in range(4): clean(KR + i)
    A(f"global_store_dwordx4 v24, {r4(KR)}, s[26:27] sc1")
    A("NO_PUB:\ns_mov_b32 exec_hi, -1")
    stamp(7)
    A("s_cmp_eq_u32 s34, 0\ns_cbranch_scc1 DONE")
    role_loads("late")
    pad()
    A("s_cmp_lg_u32 s34, 3\ns_cbranch_scc1 CNT_CHECK\ns_cmp_lg_u32 s32, 0\ns_cbranch_scc1 DONE\nCNT_CHECK:")
    A("""
    v_cmp_ne_u32 vcc, 32, v23
    s_cbranch_vccz CNT_OK
    CNT_WAIT:
    global_load_dword v23, v22, s[24:25] sc1
    s_add_u32 s41, s41, 1
    s_cmp_gt_u32 s41, 0x40000
    s_cbranch_scc1 DONE
    s_waitcnt vmcnt(0)
    v_cmp_ne_u32 vcc, 32, v23
    s_cbranch_vccnz CNT_WAIT
    CNT_OK:
    s_cmp_lg_u32 s34, 1
    s_cbranch_scc1 ROLE_CD
    """)
    G = VR
    poll("POLL_ML", ["global_load_dwordx2 v[18:19], v30, s[26:27] offset:512 sc1"], [18, 19], 20)
    A(f"""
    v_max_f32_dpp v20, v18, v18 row_half_mirror {FULL}
    s_nop 1
    v_max_f32_dpp v20, v20, v20 quad_perm:[1,0,3,2] {FULL}
    s_nop 1
    v_max_f32_dpp v20, v20, v20 quad_perm:[2,3,0,1] {FULL}
    v_sub_f32 v18, v18, v20
    v_mul_f32 v18, 0x3fb8aa3b, v18
    v_exp_f32 v18, v18
    s_nop 0
    v_mul_f32 v21, v18, v19
    s_nop 1
    v_add_f32_dpp v21, v21, v21 row_half_mirror {FULL}
    s_nop 1
    v_add_f32_dpp v21, v21, v21 quad_perm:[1,0,3,2] {FULL}
    s_nop 1
    v_add_f32_dpp v21, v21, v21 quad_perm:[2,3,0,1] {FULL}
    v_rcp_f32 v21, v21
    s_nop 0
    v_mul_f32 v18, v18, v21
    s_nop 1
    """)
    for s in range(8): A(f"v_mov_b32_dpp v{KR+8+s}, v18 row_newbcast:{s} {FULL}")
    poll("POLL_A", [f"global_load_dword v{G+s}, v29, s[26:27] offset:{REC*(s-4)} sc1" for s in range(8)],
         range(G, G + 8), 20)
    stamp(8)
    A(f"v_pk_mul_f32 v[16:17], {r2(KR+8)}, {r2(G)}")
    for s in range(2, 8, 2): A(f"v_pk_fma_f32 v[16:17], {r2(KR+8+s)}, {r2(G+s)}, v[16:17]")
    A("v_add_f32 v16, v16, v17\nv_cvt_pk_bf16_f32 v16, v16, v16")
    pad()
    matvec8(16, W1, 8, lambda t: t, lambda t: 8 + t, BQ, BQ + 8)
    wr_y = f"s_mov_b32 exec_lo, 0x00ff00ff\ns_mov_b32 exec_hi, 0xff00ff00\ns_nop 5\nds_write_b128 v27, {r4(ACC)} offset:{L_Y}\ns_mov_b64 exec, -1\ns_waitcnt lgkmcnt(0)\ns_barrier"
    A(wr_y)
    A("s_cmp_lg_u32 s32, 0\ns_cbranch_scc1 DONE")
    reduce16(16, KR)
    clean(16)
    A("global_store_dword v31, v16, s[26:27] sc1")
    stamp(9)
    A("s_branch DONE")
    A("ROLE_CD:\nv_add_u32 v20, 0x2000, v29\nglobal_load_short_d16_hi v15, v30, s[4:5]")
    pad()
    poll("POLL_B", [f"global_load_dword v{G+s}, v{(29, 20)[s>>2]}, s[26:27] offset:{2048*(s&3)-4096} sc1" for s in range(8)],
         range(G, G + 8), 21)
    stamp(8)
    for a, b in ((0, 2), (4, 6), (0, 4)): A(f"v_pk_add_f32 {r2(G+a)}, {r2(G+a)}, {r2(G+b)}")
    A(f"v_add_f32 v16, v{G}, v{G+1}\nv_and_b32 v15, 0xffff0000, v15")
    bf16r(16)
    A("v_add_f32 v15, v15, v16")
    bf16r(15)
    A("s_cmp_eq_u32 s34, 3\ns_cbranch_scc1 ROLE_D")
    A(f"""
    v_lshl_add_u32 v20, v1, 8, v25
    v_lshlrev_b32 v21, 5, v0
    ds_write_b32 v20, v15 offset:{L_H}
    v_mov_b32 v19, 0xff800000
    v_cmp_gt_u32 vcc, 8, v11
    s_waitcnt lgkmcnt(0)
    s_barrier
    ds_read_b128 {r4(KR)}, v21 offset:{L_H}
    ds_read_b128 {r4(KR+4)}, v21 offset:{L_H+16}
    v_cndmask_b32 v19, v19, 0, vcc
    s_waitcnt lgkmcnt(0)
    """)
    layernorm(KR, 15, KR + 8)
    pad()
    matvec8(15, W1, 8, lambda t: t, lambda t: 8 + t, BQ, BQ + 8)
    A(wr_y)
    reduce16(16, KR)
    bf16r(16)
    A(f"v_max_f32 v16, v16, v19\ns_nop 1\nv_mul_f32_dpp v16, v16, v16 row_ror:8 {FULL}\nv_cvt_pk_bf16_f32 v16, v16, v16")
    pad()
    matvec8(16, W2, 4, lambda t: t, lambda t: 4 + t, BQ, BQ + 8)
    A(f"""
    s_nop 7
    v_permlane32_swap_b32 v{ACC}, v{ACC+2}
    v_permlane32_swap_b32 v{ACC+1}, v{ACC+3}
    s_nop 1
    v_add_f32_dpp v16, v{ACC+2}, v{ACC} row_ror:8 {FULL}
    v_add_f32_dpp v17, v{ACC+3}, v{ACC+1} row_ror:8 {FULL}
    s_mov_b32 exec_lo, 0x00ff00ff
    s_mov_b32 exec_hi, 0x00ff00ff
    v_min_u32 v16, -2, v16
    v_min_u32 v17, -2, v17
    global_store_dwordx2 v31, v[16:17], s[26:27] sc1
    s_mov_b64 exec, -1
    """)
    stamp(9)
    A("s_branch DONE")
    A("ROLE_D:")
    for i in range(4): A(f"v_mov_b32 v{G+8+i}, 0")
    pad()
    poll("POLL_C", [f"global_load_dwordx4 {r4(G)}, v6, s[26:27] sc1", f"global_load_dwordx4 {r4(G+4)}, v7, s[26:27] sc1",
                    f"s_mov_b32 exec_hi, 0xfff\nglobal_load_dwordx4 {r4(G+8)}, v8, s[26:27] sc1\ns_mov_b32 exec_hi, -1"],
         range(G, G + 12), 21)
    stamp(9)
    for b in (4, 8):
        for i in (0, 2): A(f"v_pk_add_f32 {r2(G+i)}, {r2(G+i)}, {r2(G+b+i)}")
    scatter4(16, G)
    A(f"s_nop 1\nv_add_f32_dpp v16, v16, v16 row_ror:4 {FULL}\ns_nop 1\nv_add_f32_dpp v16, v16, v16 row_ror:8 {FULL}")
    bf16r(16)
    A("v_add_f32 v16, v16, v15\nv_cvt_pk_bf16_f32 v16, v16, v16\ns_mov_b32 exec_lo, 0x000f000f\ns_mov_b32 exec_hi, 0x000f000f")
    A("global_store_short v30, v16, s[22:23]")
    A("DONE:")
    if o["stamps"]:
        A("s_waitcnt vmcnt(0)")
        stamp(10)
        A(f"s_getreg_b32 s82, hwreg(HW_REG_XCC_ID)\ns_mov_b32 s84, s41\ns_mov_b32 s86, s34\ns_mov_b64 exec, 1\ns_lshl3_add_u32 s33, s2, s32\ns_lshl_b32 s33, s33, 6\ns_add_u32 s33, s33, {DIAG}\nv_mov_b32 v20, s33\ns_waitcnt lgkmcnt(0)")
        for i in range(14): A(f"v_mov_b32 v21, s{60+2*i}\nglobal_store_dword v20, v21, s[26:27] offset:{4*i}")
    A("EXIT:\ns_endpgm")
    L.append(f""".section .rodata,"a"
.p2align 6
.amdhsa_kernel {KN}
  .amdhsa_next_free_vgpr 256
  .amdhsa_next_free_sgpr 96
  .amdhsa_accum_offset 256
  .amdhsa_group_segment_fixed_size 0
  .amdhsa_kernarg_size 96
  .amdhsa_user_sgpr_count 2
  .amdhsa_user_sgpr_kernarg_segment_ptr 1
  .amdhsa_system_sgpr_workgroup_id_x 1
.end_amdhsa_kernel""")
    txt = "\n".join(L) + "\n"
    if o["warm"]:
        n = npad[0]
        sel = o.get("warm_sel") or [round(i * (n - 1) / 7) for i in range(8)]
        tree = "\n".join(f"    s_cmp_eq_u32 s32, {w}\n    s_cbranch_scc1 PAD{p}" for w, p in enumerate(sel))
        txt = txt.replace("    @WARMTREE@", tree)
    return txt

if __name__ == "__main__":
    out = sys.argv[1]
    kw = {}
    for a in sys.argv[2:]:
        k, v = a.split("=")
        try: v = json.loads(v)
        except Exception: pass
        kw[k] = v
    open(out, "w").write(gen(**kw))
```

```python
import sys, json
KN = "sequential_preLN__sliding_block_cached__glu_gated_reglu__decode_kernel"
DEF = dict(stamps=0, nt=1, ntw=1, rb=(0, 4), rc=(0, 0), qx=1, qg=18, warm=1, ntq=1, sleep=0, depth=8, rot=(1, 3, 5))

REG_A, REC = 0, 640
REG_B, REG_C, DIAG = 0x30000, 0x38000, 0x80000
REG_Q, EPOCH = 0xc0000, 0x7ff00
L_Q, L_ML, L_O, L_Y, L_H, L_Q1 = 0, 4096, 4352, 8448, 12544, 14592
TAGV = 3
KR, VR, WQ = 32, 96, 160
W1, W2 = 160, 192
BQ = 224
MASK = 240
ACC = 244
FULL = "row_mask:0xf bank_mask:0xf"

def gen(**kw):
    o = dict(DEF); o.update(kw)
    L = []
    def A(s):
        for x in s.split("\n"):
            x = x.strip()
            if x: L.append(x if x.endswith(":") else "    " + x)
    nt = " nt" if o["nt"] else ""
    ntw = " nt" if o["ntw"] else ""
    ntq = " nt" if o["ntq"] else ""
    vm = []
    done = [0]
    def issue(tag, s):
        d = o["depth"]
        if len(vm) - done[0] >= d:
            A(f"s_waitcnt vmcnt({d-1})"); done[0] = len(vm) - (d - 1)
        vm.append(tag); A(s)
    def wait(tag, note=True):
        i = max(i for i, t in enumerate(vm) if t == tag)
        if i < done[0]: return
        A(f"s_waitcnt vmcnt({len(vm) - 1 - i})")
        if note: done[0] = i + 1
    def stamp(i):
        if o["stamps"]: A(f"s_memrealtime s[{60+2*i}:{61+2*i}]")
    npad = [0]
    def pad():
        if o["warm"]:
            A(f"PAD{npad[0]}:\ns_cbranch_execz WARM_RET"); npad[0] += 1
    def r4(b): return f"v[{b}:{b+3}]"
    def r2(b): return f"v[{b}:{b+1}]"
    def rows_allreduce(op, x, t):
        A(f"v_mov_b32 v{t}, v{x}\ns_nop 1\nv_permlane16_swap_b32 v{t}, v{x}\n{op} v{x}, v{x}, v{t}")
        A(f"v_mov_b32 v{t}, v{x}\ns_nop 1\nv_permlane32_swap_b32 v{t}, v{x}\n{op} v{x}, v{x}, v{t}")
    def wave_allreduce(op, x, t, rors=(8, 4, 2, 1)):
        for r in rors:
            A(f"s_nop 1\n{op}_dpp v{x}, v{x}, v{x} row_ror:{r} {FULL}")
        rows_allreduce(op, x, t)
    def bf16r(x):
        A(f"v_cvt_pk_bf16_f32 v{x}, v{x}, v{x}\nv_and_b32 v{x}, 0xffff0000, v{x}")
    def layernorm(xs, own, t0):
        s, t, m = t0, t0 + 1, t0 + 2
        A(f"v_add_f32 v{s}, v{xs}, v{xs+1}\nv_add_f32 v{t}, v{xs+2}, v{xs+3}\nv_add_f32 v{m}, v{xs+4}, v{xs+5}")
        A(f"v_add_f32 v{s}, v{s}, v{t}\nv_add_f32 v{t}, v{xs+6}, v{xs+7}\nv_add_f32 v{m}, v{m}, v{t}\nv_add_f32 v{m}, v{m}, v{s}")
        wave_allreduce("v_add_f32", m, t)
        A(f"v_mul_f32 v{m}, 0x3b000000, v{m}")
        for i in range(8): A(f"v_sub_f32 v{xs+i}, v{xs+i}, v{m}")
        A(f"v_mul_f32 v{s}, v{xs}, v{xs}\nv_mul_f32 v{t}, v{xs+1}, v{xs+1}")
        for i in range(2, 8): A(f"v_fmac_f32 v{(s, t)[i & 1]}, v{xs+i}, v{xs+i}")
        A(f"v_add_f32 v{s}, v{s}, v{t}")
        bf16r(m)
        A(f"v_sub_f32 v{own}, v{own}, v{m}")
        bf16r(own)
        wave_allreduce("v_add_f32", s, t)
        A(f"v_mul_f32 v{s}, 0x3b000000, v{s}")
        bf16r(s)
        A(f"v_add_f32 v{s}, 0x3727c5ac, v{s}")
        bf16r(s)
        A(f"v_sqrt_f32 v{s}, v{s}\ns_nop 0")
        bf16r(s)
        A(f"v_rcp_f32 v{s}, v{s}\ns_nop 0\nv_mul_f32 v{own}, v{own}, v{s}\nv_cvt_pk_bf16_f32 v{own}, v{own}, v{own}")
    def matvec8(src, wbase, n, lo, hi, ta, tb):
        A("s_nop 1")
        for t in range(n): A(f"v_mov_b32_dpp v{tb+t}, v{src} row_newbcast:{lo(t)} row_mask:0xf bank_mask:0x3")
        for t in range(n): A(f"v_mov_b32_dpp v{tb+t}, v{src} row_newbcast:{hi(t)} row_mask:0xf bank_mask:0xc")
        for t in range(n + 1):
            if t < n:
                for r in range(4): A(f"v_and_b32 v{ta + 4*(t&1) + r}, v{tb+t}, v{MASK+r}")
            else:
                A("s_nop 0")
            if t > 0:
                c = "0" if t == 1 else r4(ACC)
                A(f"v_mfma_f32_16x16x32_bf16 {r4(ACC)}, {r4(ta + 4*((t-1)&1))}, {r4(wbase + 4*(t-1))}, {c}")
    def reduce16(dst, t0):
        for k in range(4): A(f"ds_read_b128 {r4(t0+4*k)}, v28 offset:{256*k}")
        A("s_waitcnt lgkmcnt(2)")
        A(f"v_pk_add_f32 {r2(t0)}, {r2(t0)}, {r2(t0+4)}\nv_pk_add_f32 {r2(t0+2)}, {r2(t0+2)}, {r2(t0+6)}")
        A("s_waitcnt lgkmcnt(0)")
        A(f"v_pk_add_f32 {r2(t0+8)}, {r2(t0+8)}, {r2(t0+12)}\nv_pk_add_f32 {r2(t0+10)}, {r2(t0+10)}, {r2(t0+14)}")
        A(f"v_pk_add_f32 {r2(t0)}, {r2(t0)}, {r2(t0+8)}\nv_pk_add_f32 {r2(t0+2)}, {r2(t0+2)}, {r2(t0+10)}")
        scatter4(dst, t0)
    def scatter4(dst, t0):
        A(f"s_nop 1\nv_permlane32_swap_b32 v{t0}, v{t0+2}\nv_permlane32_swap_b32 v{t0+1}, v{t0+3}")
        A(f"v_add_f32 v{t0}, v{t0}, v{t0+2}\nv_add_f32 v{t0+1}, v{t0+1}, v{t0+3}")
        A(f"s_nop 1\nv_permlane16_swap_b32 v{t0}, v{t0+1}\nv_add_f32 v{dst}, v{t0}, v{t0+1}")
    def poll(name, loads, regs, t):
        A(f"{name}:")
        for s in loads: A(s)
        A("s_add_u32 s41, s41, 1\ns_cmp_gt_u32 s41, 0x40000\ns_cbranch_scc1 DONE")
        A("s_waitcnt vmcnt(0)")
        check(regs, t)
        A(f"s_cbranch_vccnz {name}")
    def check(regs, t):
        rs = list(regs)
        if len(rs) == 1:
            A(f"v_cmp_ne_u32 vcc, s59, v{rs[0]}"); return
        for r in rs: A(f"v_xor_b32 v{r}, v{TAGV}, v{r}")
        A(f"v_or3_b32 v{t}, v{rs[0]}, v{rs[1]}, v{rs[2]}")
        rest = rs[3:]
        if len(rest) >= 4:
            A(f"v_or3_b32 v{t+1}, v{rest[0]}, v{rest[1]}, v{rest[2]}"); rest = rest[3:] + [t + 1]
        while len(rest) >= 2:
            A(f"v_or3_b32 v{t}, v{t}, v{rest[0]}, v{rest[1]}"); rest = rest[2:]
        assert len(rest) == 1
        A(f"v_bitop3_b32 v{t}, v{t}, v{rest[0]}, s58 bitop3:0xa8\nv_cmp_ne_u32 vcc, 0, v{t}")
    def clean(x): A(f"v_bfi_b32 v{x}, s58, v{TAGV}, v{x}")
    def publish128(lds, addr, t0):
        for k in range(8): A(f"ds_read_b128 {r4(t0+4*k)}, v12 offset:{lds + 512*k}")
        for k in range(0, 8, 2):
            A(f"s_waitcnt lgkmcnt({6-k})")
            for i in (0, 2): A(f"v_pk_add_f32 {r2(t0+4*k+i)}, {r2(t0+4*k+i)}, {r2(t0+4*k+4+i)}")
        for a, b in ((0, 8), (16, 24), (0, 16)):
            for i in (0, 2): A(f"v_pk_add_f32 {r2(t0+a+i)}, {r2(t0+a+i)}, {r2(t0+b+i)}")
        for i in range(4): clean(t0 + i)
        A(f"global_store_dwordx4 {addr}, {r4(t0)}, s[26:27] sc1")
    lb = [f"global_load_dwordx4 {r4(W1+4*t)}, v6, s[12:13] offset:{1024*t-4096}{ntw}" for t in range(8)]
    lc = [f"global_load_dwordx4 {r4(W1+4*t)}, v[6:7], off{ntw}" + ("\nv_lshl_add_u64 v[6:7], v[6:7], 0, s[44:45]" if t < 7 else "") for t in range(8)]
    lc += [f"global_load_dwordx4 {r4(W2+4*t)}, v{8 + (t >> 1)}, s[20:21] offset:{4096*(t&1)-4096}{ntw}" for t in range(4)]
    def role_loads(pos):
        for role, lst, plan in ((1, lb, o["rb"]), (2, lc, o["rc"])):
            n = (list(plan) + [99])[pos]
            if n and lst and not o.get("nowt"):
                A(f"s_cmp_lg_u32 s34, {role}\ns_cbranch_scc1 SKIP{role}_{pos}")
                for _ in range(min(n, len(lst))): A(lst.pop(0))
                A(f"SKIP{role}_{pos}:")

    hdr = open("cdna_kernels/" + KN[:-7] + ".s.ref").read().split("; Override launch")[0]
    L.append(hdr + "; @launch grid=(256,1,1) block=(512,1,1) lds=20480")
    L.append(f'.amdgcn_target "amdgcn-amd-amdhsa--gfx950"\n.text\n.globl {KN}\n.p2align 8\n.type {KN},@function\n{KN}:')
    XB = ["s_lshl_b32 s33, s31, 1\nv_add_u32 v14, s33, v11\nv_and_b32 v14, 15, v14\nv_lshl_add_u32 v14, v14, 2, v10\nv_lshl_add_u32 v14, v1, 6, v14\nv_lshlrev_b32 v14, 1, v14\ns_lshl_b32 s40, s31, 16",
          "s_lshl_b32 s33, s31, 6\nv_and_b32 v14, 1, v11\nv_lshl_add_u32 v14, v14, 2, v10\nv_lshl_add_u32 v14, v1, 3, v14\nv_add_lshl_u32 v14, v14, s33, 1\ns_lshl_b32 s40, s31, 19"]
    NQ = 2 if o["qx"] else 16
    stamp(0)
    A("""
    s_load_dwordx8 s[4:11], s[0:1], 0
    s_load_dwordx16 s[12:27], s[0:1], 32
    s_cmp_ge_u32 s2, 256
    s_cbranch_scc1 EXIT
    s_and_b32 s28, s2, 7
    s_lshr_b32 s29, s2, 3
    s_lshr_b32 s33, s29, 3
    s_lshl2_add_u32 s30, s28, s33
    s_and_b32 s31, s29, 7
    v_lshrrev_b32 v1, 6, v0
    v_and_b32 v0, 63, v0
    v_readfirstlane_b32 s32, v1
    v_lshrrev_b32 v10, 4, v0
    v_and_b32 v11, 15, v0
    v_lshlrev_b32 v12, 4, v0
    v_lshlrev_b32 v13, @QW@, v1
    v_lshl_add_u32 v13, v10, 13, v13
    v_lshl_add_u32 v13, v11, 4, v13
    @XB@
    v_lshlrev_b32 v4, 14, v1
    v_bfe_u32 v2, v0, 2, 2
    v_lshl_add_u32 v2, v2, 8, v4
    v_lshl_add_u32 v2, v10, 6, v2
    v_and_b32 v3, 3, v0
    v_lshl_add_u32 v2, v3, 4, v2
    v_add_u32 v4, v12, v4
    s_mul_i32 s56, s32, @RA@
    s_mul_i32 s33, s31, @RB@
    s_add_u32 s56, s56, s33
    s_mul_i32 s33, s30, @RC@
    s_add_u32 s56, s56, s33
    s_and_b32 s56, s56, 15
    s_lshl_b32 s56, s56, 10
    s_mov_b32 s57, s56
    s_mov_b32 s50, 0x20000
    s_mov_b32 s51, 0x20000
    s_mov_b32 s54, 0x20000
    s_mov_b32 s55, 0x20000
    s_lshl_b32 s42, s30, 23
    s_lshl_b32 s43, s31, 17
    s_add_u32 s42, s42, s43
    s_add_u32 s42, s42, 0x700000
    s_lshl_b32 s33, s30, 8
    s_mov_b32 s38, 0x400000
    s_mov_b32 s39, 0x20000
    s_sub_u32 s38, s38, s33
    s_mov_b32 s41, 0
    s_waitcnt lgkmcnt(0)
    s_add_u32 s36, s10, s33
    s_addc_u32 s37, s11, 0
    """.replace("@QW@", "16" if o["qx"] else "19").replace("@XB@", XB[o["qx"]]).replace("@RA@", str(o["rot"][0])).replace("@RB@", str(o["rot"][1])).replace("@RC@", str(o["rot"][2])))
    issue("xa", "global_load_dwordx4 v[16:19], v12, s[4:5]")
    A(f"s_load_dword s59, s[26:27], {EPOCH}")
    issue("xb", "global_load_short_d16_hi v15, v14, s[4:5]")
    A("s_add_u32 s48, s6, s42\ns_addc_u32 s49, s7, 0\ns_add_u32 s52, s8, s42\ns_addc_u32 s53, s9, 0")
    def ldq(j):
        issue(f"q{j}", f"buffer_load_dwordx4 {r4(WQ+4*j)}, v13, s[36:39], s40 offen{ntq}")
        if j < NQ - 1: A("s_add_u32 s40, s40, 0x8000" + ("" if o["qx"] else "\ns_and_b32 s40, s40, 0x7ffff"))
    def ldk(j): issue(f"k{j}", f"buffer_load_dwordx4 {r4(KR+4*j)}, v2, s[48:51], s56 offen{nt}\ns_add_u32 s56, s56, 0x400\ns_and_b32 s56, s56, 0x3fff")
    def ldv(j):
        issue(f"v{j}", f"buffer_load_dwordx4 {r4(VR+4*j)}, v4, s[52:55], s57 offen{nt}\ns_add_u32 s57, s57, 0x400\ns_and_b32 s57, s57, 0x3fff")
    pend = ["q0", "q1"]
    qs = [f"q{j}" for j in range(2, NQ)]; acc = 0
    num, den = o.get("qmix", (1, 1))
    for e in [f"k{j}" for j in range(16)] + [f"v{j}" for j in range(16)]:
        pend.append(e); acc += num
        while acc >= den and qs: pend.append(qs.pop(0)); acc -= den
    GQ = "global_load_dwordx4 v[16:19], v14, s[26:27] sc1"
    if o["qx"]: pend.insert(2 + o["qg"], "g0")
    def nxt(n=1):
        for _ in range(n):
            if pend:
                e = pend.pop(0); {"q": ldq, "k": ldk, "v": ldv, "g": lambda j: issue("g0", GQ)}[e[0]](int(e[1:]))
    def upto(tag, ahead):
        while tag in pend: nxt()
        while pend and len(vm) - 1 - vm.index(tag) < ahead: nxt()
    nxt(o["depth"] - 2)
    stamp(1)
    A(f"""
    s_mov_b32 s34, 0
    s_mov_b32 s35, s29
    s_cmp_lt_u32 s29, 8
    s_cselect_b32 s34, 1, s34
    s_sub_u32 s33, s2, 64
    s_cmp_lt_u32 s33, 43
    s_cselect_b32 s34, 2, s34
    s_cselect_b32 s35, s33, s35
    s_sub_u32 s33, s2, 128
    s_cmp_lt_u32 s33, 32
    s_cselect_b32 s34, 3, s34
    s_cselect_b32 s35, s33, s35
    s_mov_b32 s44, {4*2752}
    s_mov_b32 s45, 0
    v_and_b32 v20, 1, v0
    v_lshlrev_b32 v20, 4, v20
    v_mov_b32 v21, 0xffff
    v_lshlrev_b32 v20, v20, v21
    v_bfe_u32 v21, v0, 1, 2
    """)
    for r in range(4):
        A(f"v_cmp_eq_u32 vcc, {r}, v21\ns_nop 1\nv_cndmask_b32 v{MASK+r}, 0, v20, vcc")
    A(f"""
    v_lshrrev_b32 v20, 3, v0
    v_and_b32 v21, 7, v0
    v_and_b32 v22, 1, v20
    s_lshl_b32 s33, s30, 3
    s_add_u32 s33, s33, s31
    s_mul_i32 s46, s33, {REC}
    v_add_u32 v24, s46, v12
    v_lshlrev_b32 v25, 2, v0
    v_lshlrev_b32 v26, 9, v1
    v_lshl_add_u32 v26, v11, 5, v26
    v_lshl_add_u32 v26, v10, 4, v26
    v_lshl_add_u32 v27, v1, 1, v22
    v_lshlrev_b32 v27, 8, v27
    v_lshl_add_u32 v27, v21, 5, v27
    v_and_b32 v23, 1, v10
    v_lshl_add_u32 v27, v23, 4, v27
    v_lshlrev_b32 v28, 10, v10
    v_lshl_add_u32 v28, v11, 4, v28
    v_add_u32 v28, {L_Y}, v28
    v_mov_b32 v6, 0
    v_mov_b32 v7, 0
    v_mov_b32 v8, 0
    v_mov_b32 v9, 0
    v_mov_b32 v29, 0
    v_mov_b32 v30, 0
    v_mov_b32 v31, 0
    s_lshl_b32 s33, s33, 10
    s_add_u32 s33, s33, {REG_Q}
    v_add_u32 v5, s33, v12
    s_lshl3_add_u32 s33, s30, s32
    s_lshl_b32 s33, s33, 10
    s_add_u32 s33, s33, {REG_Q}
    v_add_u32 v14, s33, v12
    s_cmp_eq_u32 s34, 2
    s_cbranch_scc1 ADDR_C
    s_cmp_eq_u32 s34, 3
    s_cbranch_scc1 ADDR_D
    s_lshl_b32 s33, s28, 19
    s_lshl_b32 s42, s35, 7
    s_add_u32 s33, s33, s42
    s_add_u32 s33, s33, 0x1000
    v_lshlrev_b32 v6, 16, v1
    v_lshl_add_u32 v6, v20, 13, v6
    v_lshl_add_u32 v6, v21, 4, v6
    v_add_u32 v6, s33, v6
    s_lshr_b32 s33, s32, 1
    s_lshl2_add_u32 s33, s28, s33
    s_mul_i32 s33, s33, {8*REC}
    v_mul_u32_u24 v30, {REC}, v21
    v_add_u32 v30, s33, v30
    s_and_b32 s42, s32, 1
    s_lshl_b32 s42, s42, 8
    s_add_u32 s33, s33, s42
    s_add_u32 s33, s33, {4*REC}
    v_add_u32 v29, s33, v25
    s_lshl3_add_u32 s33, s28, s35
    s_lshl_b32 s33, s33, 8
    s_add_u32 s33, s33, {REG_B}
    v_add_u32 v31, s33, v25
    s_branch ADDR_DONE
    ADDR_C:
    v_lshl_add_u32 v6, v22, 5, v10
    v_lshl_add_u32 v6, v1, 6, v6
    v_mul_u32_u24 v6, 2752, v6
    v_and_b32 v7, 3, v0
    v_lshl_add_u32 v6, v7, 4, v6
    s_lshl_b32 s33, s35, 6
    v_add_u32 v6, s33, v6
    v_mov_b32 v7, 0
    v_cmp_gt_u32 vcc, 4, v21
    v_mov_b32 v8, s16
    v_mov_b32 v9, s17
    v_mov_b32 v29, s18
    v_mov_b32 v30, s19
    v_cndmask_b32 v8, v29, v8, vcc
    v_cndmask_b32 v9, v30, v9, vcc
    v_lshl_add_u64 v[6:7], v[6:7], 0, v[8:9]
    v_lshl_add_u32 v8, v22, 4, v10
    v_lshlrev_b32 v8, 10, v8
    v_lshl_add_u32 v8, v1, 7, v8
    v_lshl_add_u32 v8, v21, 4, v8
    s_lshl_b32 s33, s35, 15
    s_add_u32 s33, s33, 0x1000
    v_add_u32 v8, s33, v8
    v_add_u32 v9, 0x2000, v8
    v_lshl_add_u32 v29, v1, 8, v25
    v_add_u32 v29, {REG_B + 4096}, v29
    v_lshl_add_u32 v30, v11, 2, v10
    v_lshl_add_u32 v30, v1, 6, v30
    v_lshlrev_b32 v30, 1, v30
    s_lshl_b32 s33, s35, 11
    s_add_u32 s33, s33, {REG_C}
    v_lshlrev_b32 v31, 8, v1
    v_lshl_add_u32 v31, v21, 5, v31
    v_lshl_add_u32 v31, v23, 5, v31
    v_lshrrev_b32 v20, 5, v0
    v_lshl_add_u32 v31, v20, 4, v31
    v_add_u32 v31, s33, v31
    s_branch ADDR_DONE
    ADDR_D:
    v_and_b32 v20, 3, v0
    v_lshrrev_b32 v6, 2, v0
    v_lshlrev_b32 v6, 11, v6
    v_lshl_add_u32 v6, v20, 4, v6
    s_lshl_b32 s33, s35, 6
    s_add_u32 s33, s33, {REG_C}
    v_add_u32 v6, s33, v6
    v_add_u32 v7, 0x8000, v6
    v_add_u32 v8, 0x10000, v6
    s_and_b32 s33, s35, 3
    s_lshl_b32 s33, s33, 2
    v_lshl_add_u32 v29, v10, 4, v20
    v_add_u32 v29, s33, v29
    v_lshlrev_b32 v29, 2, v29
    s_lshr_b32 s33, s35, 2
    s_lshl_b32 s33, s33, 8
    s_add_u32 s33, s33, {REG_B + 4096}
    v_add_u32 v29, s33, v29
    v_lshl_add_u32 v30, v20, 2, v10
    v_lshlrev_b32 v30, 1, v30
    s_lshl_b32 s33, s35, 5
    v_add_u32 v30, s33, v30
    v_lshrrev_b32 v9, 1, v10
    v_lshl_add_u32 v9, v9, 2, v20
    v_lshl_add_u32 v9, v9, 1, v23
    v_lshl_add_u32 v31, v9, 1, s33
    v_and_b32 v21, 3, v9
    v_lshrrev_b32 v9, 2, v9
    v_lshl_add_u32 v9, v21, 4, v9
    v_lshlrev_b32 v9, 2, v9
    ADDR_DONE:
    s_waitcnt lgkmcnt(0)
    s_add_u32 s59, s59, 1
    s_mov_b32 s58, 0xff
    s_and_b32 s33, s59, s58
    v_mov_b32 v{TAGV}, s33
    """)
    if o["warm"]:
        A("s_mov_b64 exec, 0\n@WARMTREE@\nWARM_RET:\ns_mov_b64 exec, -1")
    wait("xb")
    stamp(2)
    for i in range(4):
        A(f"v_lshlrev_b32 v{BQ+2*i}, 16, v{16+i}\nv_and_b32 v{BQ+2*i+1}, 0xffff0000, v{16+i}")
    A("v_and_b32 v15, 0xffff0000, v15")
    layernorm(BQ, 15, BQ + 8)
    A("s_nop 1")
    pad()
    for j in range(NQ + 1):
        if j < NQ:
            for r in range(4):
                A(f"v_and_b32_dpp v{BQ+4*(j&1)+r}, v15, v{MASK+r} row_newbcast:{j} {FULL}")
        else: A("s_nop 1")
        if j > 0:
            upto(f"q{j-1}", o["depth"] - 1); wait(f"q{j-1}")
            c = "0" if j == 1 else r4(ACC)
            A(f"v_mfma_f32_16x16x32_bf16 {r4(ACC)}, {r4(BQ+4*((j-1)&1))}, {r4(WQ+4*(j-1))}, {c}")
    A(f"s_nop 7\ns_mov_b32 exec_hi, 0\nds_write_b128 v26, {r4(ACC)} offset:{L_Q1 if o['qx'] else L_Q}\ns_mov_b32 exec_hi, -1")
    if o["qx"]:
        A("s_waitcnt lgkmcnt(0)\ns_barrier\ns_cmp_lg_u32 s32, 0\ns_cbranch_scc1 NO_QPUB\nv_lshlrev_b32 v20, 3, v0")
        T0 = WQ + 8
        for k in range(8): A(f"ds_read_b64 {r2(T0+2*k)}, v20 offset:{L_Q1 + 512*k}")
        A("s_waitcnt lgkmcnt(0)")
        for a, b in ((0, 2), (4, 6), (8, 10), (12, 14), (0, 4), (8, 12), (0, 8)): A(f"v_pk_add_f32 {r2(T0+a)}, {r2(T0+a)}, {r2(T0+b)}")
        A(f"v_mov_b32 v{T0+2}, s59\nv_mov_b32 v{T0+3}, s59\nglobal_store_dwordx4 v5, {r4(T0)}, s[26:27] sc1\nNO_QPUB:")
        if "depth2" in o: o["depth"] = o["depth2"]
    role_loads(0)
    if o["qx"]:
        upto("g0", o["depth"] - 1); wait("g0")
        check([18], 20)
        A("s_cbranch_vccz Q_OK")
        poll("POLL_Q", ["global_load_dwordx4 v[16:19], v14, s[26:27] sc1"], [18], 20)
        A(f"Q_OK:\nv_lshlrev_b32 v20, 3, v0\nv_lshl_add_u32 v20, v1, 9, v20\nds_write_b64 v20, v[16:17] offset:{L_Q}")
    nxt(o.get("pre_bar", 2))
    A(f"""
    v_bfe_u32 v21, v0, 2, 2
    v_and_b32 v20, 3, v0
    v_lshl_add_u32 v20, v10, 2, v20
    v_lshlrev_b32 v20, 5, v20
    v_lshl_add_u32 v20, v21, 10, v20
    s_waitcnt lgkmcnt(0)
    s_barrier
    """)
    stamp(3)
    pad()
    for k in range(4): A(f"ds_read_b128 {r4(BQ+4*k)}, v20 offset:{L_Q + 512*(k>>1) + 16*(k&1)}")
    A("s_waitcnt lgkmcnt(0)")
    for i in range(0, 8, 2): A(f"v_pk_add_f32 {r2(BQ+i)}, {r2(BQ+i)}, {r2(BQ+8+i)}")
    for r in (4, 8):
        for i in range(8): A(f"v_add_f32_dpp v{BQ+i}, v{BQ+i}, v{BQ+i} row_ror:{r} {FULL}")
    for i in range(4): A(f"v_cvt_pk_bf16_f32 v{16+i}, v{BQ+2*i}, v{BQ+2*i+1}")
    for jj in range(4):
        A(f"v_cmp_eq_u32 vcc, {jj}, v21\ns_nop 1")
        for r in range(4): A(f"v_cndmask_b32 v{BQ+4*jj+r}, 0, v{16+r}, vcc")
    A("s_nop 1")
    DS = [16, 248, 252, ACC]
    for t in range(4):
        for jj in range(4):
            upto(f"k{4*t+jj}", o["depth"] - 1); wait(f"k{4*t+jj}")
            c = "0" if jj == 0 else r4(DS[t])
            A(f"v_mfma_f32_16x16x32_bf16 {r4(DS[t])}, {r4(KR+16*t+4*jj)}, {r4(BQ+4*jj)}, {c}")
            if o.get("qk_issue", 1): nxt()
    nxt(99)
    stamp(4)
    role_loads(1)
    A("s_nop 7")
    S = BQ
    for r in range(4):
        for t in range(4):
            if r == 0: A(f"v_mov_b32_dpp v{S+t}, v{DS[t]} quad_perm:[0,0,0,0] {FULL}")
            else: A(f"v_add_f32_dpp v{S+t}, v{DS[t]+r}, v{S+t} quad_perm:[{r},{r},{r},{r}] {FULL}")
    for t in range(4):
        bf16r(S + t); A(f"v_mul_f32 v{S+t}, 0x3db504f3, v{S+t}"); bf16r(S + t)
    pad()
    A(f"v_max3_f32 v16, v{S}, v{S+1}, v{S+2}\nv_max_f32 v16, v16, v{S+3}")
    wave_allreduce("v_max_f32", 16, 18, (8, 4))
    for t in range(4): A(f"v_sub_f32 v{S+t}, v{S+t}, v16\nv_mul_f32 v{S+t}, 0x3fb8aa3b, v{S+t}\nv_exp_f32 v{S+t}, v{S+t}")
    A(f"s_nop 0\nv_add_f32 v17, v{S}, v{S+1}\nv_add_f32 v18, v{S+2}, v{S+3}\nv_add_f32 v17, v17, v18")
    wave_allreduce("v_add_f32", 17, 18, (8, 4))
    A(f"""
    v_lshlrev_b32 v20, 3, v1
    v_and_b32 v21, 7, v0
    v_lshlrev_b32 v21, 3, v21
    s_mov_b64 exec, 1
    ds_write_b64 v20, v[16:17] offset:{L_ML}
    s_mov_b64 exec, -1
    s_waitcnt lgkmcnt(0)
    s_barrier
    ds_read_b64 v[18:19], v21 offset:{L_ML}
    s_waitcnt lgkmcnt(0)
    v_max_f32_dpp v20, v18, v18 row_half_mirror {FULL}
    s_nop 1
    v_max_f32_dpp v20, v20, v20 quad_perm:[1,0,3,2] {FULL}
    s_nop 1
    v_max_f32_dpp v20, v20, v20 quad_perm:[2,3,0,1] {FULL}
    v_sub_f32 v16, v16, v20
    v_sub_f32 v18, v18, v20
    v_mul_f32 v16, 0x3fb8aa3b, v16
    v_mul_f32 v18, 0x3fb8aa3b, v18
    v_exp_f32 v16, v16
    v_exp_f32 v18, v18
    s_nop 0
    v_mul_f32 v21, v18, v19
    """)
    for t in range(4): A(f"v_mul_f32 v{S+t}, v{S+t}, v16\nv_cvt_pk_bf16_f32 v{S+t}, v{S+t}, v{S+t}")
    A(f"""
    v_add_f32_dpp v21, v21, v21 row_half_mirror {FULL}
    s_nop 1
    v_add_f32_dpp v21, v21, v21 quad_perm:[1,0,3,2] {FULL}
    s_nop 1
    v_add_f32_dpp v21, v21, v21 quad_perm:[2,3,0,1] {FULL}
    v_bfi_b32 v20, s58, v{TAGV}, v20
    v_bfi_b32 v21, s58, v{TAGV}, v21
    v_mov_b32 v22, v{TAGV}
    v_mov_b32 v23, v{TAGV}
    s_mov_b64 exec, 1
    global_store_dwordx4 v24, v[20:23], s[26:27] offset:512 sc1
    s_mov_b64 exec, -1
    """)
    vm.append("ml")
    stamp(5)
    pad()
    for j in range(16):
        for r in range(4):
            A(f"v_and_b32_dpp v{KR+4*j+r}, v{S+(j>>2)}, v{MASK+r} row_newbcast:{4*(j&3)} {FULL}")
    A("s_nop 0")
    pad()
    def pv(extra):
        for j in range(16):
            n = len(vm) - 1 - vm.index(f"v{j}") + extra
            c = "0" if j == 0 else r4(ACC)
            A(f"s_waitcnt vmcnt({n})\nv_mfma_f32_16x16x32_bf16 {r4(ACC)}, {r4(KR+4*j)}, {r4(VR+4*j)}, {c}")
    var = [(r, p[1]) for r, p in ((1, o["rb"]), (2, o["rc"])) if p[1] and not o.get("nowt")]
    for r, n in var:
        A(f"s_cmp_lg_u32 s34, {r}\ns_cbranch_scc1 PV_NOT{r}"); pv(n); A(f"s_branch PV_DONE\nPV_NOT{r}:")
    pv(0)
    A("PV_DONE:")
    stamp(6)
    A(f"s_nop 6\ns_mov_b32 exec_hi, 0\nds_write_b128 v26, {r4(ACC)} offset:{L_O}\ns_waitcnt lgkmcnt(0)\ns_barrier")
    A("s_cmp_lg_u32 s32, 0\ns_cbranch_scc1 NO_PUB")
    publish128(L_O, "v24", KR)
    A("NO_PUB:\ns_mov_b32 exec_hi, -1")
    stamp(7)
    A("s_cmp_eq_u32 s34, 0\ns_cbranch_scc1 DONE")
    role_loads(2)
    pad()
    A("s_cmp_lg_u32 s34, 3\ns_cbranch_scc1 CNT_CHECK\ns_cmp_lg_u32 s32, 0\ns_cbranch_scc1 DONE\nCNT_CHECK:")
    A("""
    s_cmp_lg_u32 s34, 1
    s_cbranch_scc1 ROLE_CD
    """)
    G = VR
    poll("POLL_ML", ["global_load_dwordx4 v[16:19], v30, s[26:27] offset:512 sc1"], range(16, 20), 20)
    A(f"""
    v_and_b32 v18, 0xffff0000, v16
    v_mov_b32 v19, v17
    s_nop 0
    v_max_f32_dpp v20, v18, v18 row_half_mirror {FULL}
    s_nop 1
    v_max_f32_dpp v20, v20, v20 quad_perm:[1,0,3,2] {FULL}
    s_nop 1
    v_max_f32_dpp v20, v20, v20 quad_perm:[2,3,0,1] {FULL}
    v_sub_f32 v18, v18, v20
    v_mul_f32 v18, 0x3fb8aa3b, v18
    v_exp_f32 v18, v18
    s_nop 0
    v_mul_f32 v21, v18, v19
    s_nop 1
    v_add_f32_dpp v21, v21, v21 row_half_mirror {FULL}
    s_nop 1
    v_add_f32_dpp v21, v21, v21 quad_perm:[1,0,3,2] {FULL}
    s_nop 1
    v_add_f32_dpp v21, v21, v21 quad_perm:[2,3,0,1] {FULL}
    v_rcp_f32 v21, v21
    s_nop 0
    v_mul_f32 v18, v18, v21
    s_nop 1
    """)
    for s in range(8): A(f"v_mov_b32_dpp v{KR+8+s}, v18 row_newbcast:{s} {FULL}")
    poll("POLL_A", [f"global_load_dword v{G+s}, v29, s[26:27] offset:{REC*(s-4)} sc1" for s in range(8)],
         range(G, G + 8), 20)
    stamp(8)
    A(f"v_pk_mul_f32 v[16:17], {r2(KR+8)}, {r2(G)}")
    for s in range(2, 8, 2): A(f"v_pk_fma_f32 v[16:17], {r2(KR+8+s)}, {r2(G+s)}, v[16:17]")
    A("v_add_f32 v16, v16, v17\nv_cvt_pk_bf16_f32 v16, v16, v16")
    pad()
    matvec8(16, W1, 8, lambda t: t, lambda t: 8 + t, BQ, BQ + 8)
    wr_y = f"s_mov_b32 exec_lo, 0x00ff00ff\ns_mov_b32 exec_hi, 0xff00ff00\ns_nop 5\nds_write_b128 v27, {r4(ACC)} offset:{L_Y}\ns_mov_b64 exec, -1\ns_waitcnt lgkmcnt(0)\ns_barrier"
    A(wr_y)
    A("s_cmp_lg_u32 s32, 0\ns_cbranch_scc1 DONE")
    reduce16(16, KR)
    clean(16)
    A("s_nop 1")
    for i in (1, 2, 3): A(f"v_mov_b32_dpp v{16+i}, v16 quad_perm:[{i},{i},{i},{i}] {FULL}")
    A("s_mov_b32 exec_lo, 0x11111111\ns_mov_b32 exec_hi, 0x11111111\nglobal_store_dwordx4 v31, v[16:19], s[26:27] sc1")
    stamp(9)
    A("s_branch DONE")
    A("ROLE_CD:\nv_add_u32 v20, 0x2000, v29\nglobal_load_short_d16_hi v15, v30, s[4:5]")
    pad()
    poll("POLL_B", [f"global_load_dword v{G+s}, v{(29, 20)[s>>2]}, s[26:27] offset:{2048*(s&3)-4096} sc1" for s in range(8)],
         range(G, G + 8), 22)
    stamp(8)
    for a, b in ((0, 2), (4, 6), (0, 4)): A(f"v_pk_add_f32 {r2(G+a)}, {r2(G+a)}, {r2(G+b)}")
    A(f"v_add_f32 v16, v{G}, v{G+1}\nv_and_b32 v15, 0xffff0000, v15")
    bf16r(16)
    A("v_add_f32 v15, v15, v16")
    bf16r(15)
    A("s_cmp_eq_u32 s34, 3\ns_cbranch_scc1 ROLE_D")
    A(f"""
    v_lshl_add_u32 v20, v1, 8, v25
    v_lshlrev_b32 v21, 5, v0
    ds_write_b32 v20, v15 offset:{L_H}
    v_mov_b32 v19, 0xff800000
    v_cmp_gt_u32 vcc, 8, v11
    s_waitcnt lgkmcnt(0)
    s_barrier
    ds_read_b128 {r4(KR)}, v21 offset:{L_H}
    ds_read_b128 {r4(KR+4)}, v21 offset:{L_H+16}
    v_cndmask_b32 v19, v19, 0, vcc
    s_waitcnt lgkmcnt(0)
    """)
    stamp(11)
    layernorm(KR, 15, KR + 8)
    stamp(12)
    pad()
    matvec8(15, W1, 8, lambda t: t, lambda t: 8 + t, BQ, BQ + 8)
    A(wr_y)
    stamp(13)
    reduce16(16, KR)
    bf16r(16)
    A(f"v_max_f32 v16, v16, v19\ns_nop 1\nv_mul_f32_dpp v16, v16, v16 row_ror:8 {FULL}\nv_cvt_pk_bf16_f32 v16, v16, v16")
    pad()
    matvec8(16, W2, 4, lambda t: t, lambda t: 4 + t, BQ, BQ + 8)
    A(f"""
    s_nop 7
    v_permlane32_swap_b32 v{ACC}, v{ACC+2}
    v_permlane32_swap_b32 v{ACC+1}, v{ACC+3}
    s_nop 1
    v_add_f32_dpp v16, v{ACC+2}, v{ACC} row_ror:8 {FULL}
    v_add_f32_dpp v17, v{ACC+3}, v{ACC+1} row_ror:8 {FULL}
    v_bfi_b32 v16, s58, v{TAGV}, v16
    v_bfi_b32 v17, s58, v{TAGV}, v17
    s_nop 0
    v_mov_b32_dpp v18, v16 quad_perm:[1,1,3,3] {FULL}
    v_mov_b32_dpp v19, v17 quad_perm:[1,1,3,3] {FULL}
    s_mov_b32 exec_lo, 0x00550055
    s_mov_b32 exec_hi, 0x00550055
    global_store_dwordx4 v31, v[16:19], s[26:27] sc1
    s_mov_b64 exec, -1
    """)
    stamp(9)
    A("s_branch DONE")
    A("ROLE_D:")
    A("ds_bpermute_b32 v15, v9, v15")
    A("s_waitcnt lgkmcnt(0)")
    pad()
    poll("POLL_C", [f"global_load_dwordx4 {r4(G)}, v6, s[26:27] sc1", f"global_load_dwordx4 {r4(G+4)}, v7, s[26:27] sc1",
                    "".join(f"v_mov_b32 v{G+8+i}, v{TAGV}\n" for i in range(4)) + f"s_mov_b32 exec_hi, 0xfff\nglobal_load_dwordx4 {r4(G+8)}, v8, s[26:27] sc1\ns_mov_b32 exec_hi, -1"],
         range(G, G + 12), 22)
    stamp(9)
    for b in (4, 8):
        for i in (0, 2): A(f"v_pk_add_f32 {r2(G+i)}, {r2(G+i)}, {r2(G+b+i)}")
    scatter4(16, G)
    A(f"s_nop 1\nv_add_f32_dpp v16, v16, v16 row_ror:4 {FULL}\ns_nop 1\nv_add_f32_dpp v16, v16, v16 row_ror:8 {FULL}")
    bf16r(16)
    A("v_add_f32 v16, v16, v15\nv_cvt_pk_bf16_f32 v16, v16, v16\ns_mov_b32 exec_lo, 0x000f000f\ns_mov_b32 exec_hi, 0x000f000f")
    A("global_store_short v31, v16, s[22:23]")
    A(f"s_cmp_lg_u32 s35, 0\ns_cbranch_scc1 DONE\ns_mov_b64 exec, 1\nv_mov_b32 v20, {EPOCH}\nv_mov_b32 v21, s59\nglobal_store_dword v20, v21, s[26:27]")
    A("DONE:")
    if o["stamps"]:
        A("s_waitcnt vmcnt(0)")
        stamp(10)
        A(f"s_mov_b32 s88, s41\ns_mov_b32 s90, s34\ns_mov_b64 exec, 1\ns_lshl3_add_u32 s33, s2, s32\ns_lshl_b32 s33, s33, 6\ns_add_u32 s33, s33, {DIAG}\nv_mov_b32 v20, s33\ns_waitcnt lgkmcnt(0)")
        for i in range(16): A(f"v_mov_b32 v21, s{60+2*i}\nglobal_store_dword v20, v21, s[26:27] offset:{4*i}")
    A("EXIT:\ns_endpgm")
    L.append(f""".section .rodata,"a"
.p2align 6
.amdhsa_kernel {KN}
  .amdhsa_next_free_vgpr 256
  .amdhsa_next_free_sgpr 96
  .amdhsa_accum_offset 256
  .amdhsa_group_segment_fixed_size 0
  .amdhsa_kernarg_size 96
  .amdhsa_user_sgpr_count 2
  .amdhsa_user_sgpr_kernarg_segment_ptr 1
  .amdhsa_system_sgpr_workgroup_id_x 1
.end_amdhsa_kernel""")
    txt = "\n".join(L) + "\n"
    txt = txt.replace("@ATOM@", "s_nop 0" if o.get("noatom") else "global_atomic_add v21, v20, s[24:25] sc1")
    if o.get("noatom"): txt = txt.replace("v_cmp_gt_u32 vcc, 32, v23", "v_cmp_gt_u32 vcc, 0, v23")
    if o["warm"]:
        n = npad[0]
        sel = o.get("warm_sel") or [round(i * (n - 1) / 7) for i in range(8)]
        tree = "\n".join(f"    s_cmp_eq_u32 s32, {w}\n    s_cbranch_scc1 PAD{p}" for w, p in enumerate(sel))
        txt = txt.replace("    @WARMTREE@", tree)
    return txt

if __name__ == "__main__":
    out = sys.argv[1]
    kw = {}
    for a in sys.argv[2:]:
        k, v = a.split("=")
        try: v = json.loads(v)
        except Exception: pass
        kw[k] = v
    open(out, "w").write(gen(**kw))
```

```python
import sys, json
KN = "sequential_preLN__sliding_block_cached__glu_gated_reglu__decode_kernel"
DEF = dict(stamps=0, nt=1, ntw=1, rb=(0, 4), rc=(0, 0), qx=1, qg=18, warm=1, ntq=1, sleep=0, depth=8, rot=(1, 3, 5))

REG_A, REC = 0, 640
REG_B, REG_C, DIAG = 0x30000, 0x38000, 0x80000
REG_Q, EPOCH = 0xc0000, 0x7ff00
L_Q, L_ML, L_O, L_Y, L_H, L_Q1 = 0, 4096, 4352, 8448, 12544, 14592
TAGV = 3
KR, VR, WQ = 32, 96, 160
W1, W2 = 160, 192
BQ = 224
MASK = 240
ACC = 244
FULL = "row_mask:0xf bank_mask:0xf"

def gen(**kw):
    o = dict(DEF); o.update(kw)
    L = []
    def A(s):
        for x in s.split("\n"):
            x = x.strip()
            if x: L.append(x if x.endswith(":") else "    " + x)
    nt = " nt" if o["nt"] else ""
    ntw = " nt" if o["ntw"] else ""
    ntq = " nt" if o["ntq"] else ""
    vm = []
    done = [0]
    def issue(tag, s):
        d = o["depth"]
        if len(vm) - done[0] >= d:
            A(f"s_waitcnt vmcnt({d-1})"); done[0] = len(vm) - (d - 1)
        vm.append(tag); A(s)
    def wait(tag, note=True):
        i = max(i for i, t in enumerate(vm) if t == tag)
        if i < done[0]: return
        A(f"s_waitcnt vmcnt({len(vm) - 1 - i})")
        if note: done[0] = i + 1
    def stamp(i):
        if o["stamps"]: A(f"s_memrealtime s[{60+2*i}:{61+2*i}]")
    npad = [0]
    def pad():
        if o["warm"]:
            A(f"PAD{npad[0]}:\ns_cbranch_execz WARM_RET"); npad[0] += 1
    def r4(b): return f"v[{b}:{b+3}]"
    def r2(b): return f"v[{b}:{b+1}]"
    def rows_allreduce(op, x, t):
        A(f"v_mov_b32 v{t}, v{x}\ns_nop 1\nv_permlane16_swap_b32 v{t}, v{x}\n{op} v{x}, v{x}, v{t}")
        A(f"v_mov_b32 v{t}, v{x}\ns_nop 1\nv_permlane32_swap_b32 v{t}, v{x}\n{op} v{x}, v{x}, v{t}")
    def wave_allreduce(op, x, t, rors=(8, 4, 2, 1)):
        for r in rors:
            A(f"s_nop 1\n{op}_dpp v{x}, v{x}, v{x} row_ror:{r} {FULL}")
        rows_allreduce(op, x, t)
    def bf16r(x):
        A(f"v_cvt_pk_bf16_f32 v{x}, v{x}, v{x}\nv_and_b32 v{x}, 0xffff0000, v{x}")
    def layernorm(xs, own, t0):
        s, t, m = t0, t0 + 1, t0 + 2
        A(f"v_add_f32 v{s}, v{xs}, v{xs+1}\nv_add_f32 v{t}, v{xs+2}, v{xs+3}\nv_add_f32 v{m}, v{xs+4}, v{xs+5}")
        A(f"v_add_f32 v{s}, v{s}, v{t}\nv_add_f32 v{t}, v{xs+6}, v{xs+7}\nv_add_f32 v{m}, v{m}, v{t}\nv_add_f32 v{m}, v{m}, v{s}")
        wave_allreduce("v_add_f32", m, t)
        A(f"v_mul_f32 v{m}, 0x3b000000, v{m}")
        for i in range(8): A(f"v_sub_f32 v{xs+i}, v{xs+i}, v{m}")
        A(f"v_mul_f32 v{s}, v{xs}, v{xs}\nv_mul_f32 v{t}, v{xs+1}, v{xs+1}")
        for i in range(2, 8): A(f"v_fmac_f32 v{(s, t)[i & 1]}, v{xs+i}, v{xs+i}")
        A(f"v_add_f32 v{s}, v{s}, v{t}")
        bf16r(m)
        A(f"v_sub_f32 v{own}, v{own}, v{m}")
        bf16r(own)
        wave_allreduce("v_add_f32", s, t)
        A(f"v_mul_f32 v{s}, 0x3b000000, v{s}")
        bf16r(s)
        A(f"v_add_f32 v{s}, 0x3727c5ac, v{s}")
        bf16r(s)
        A(f"v_sqrt_f32 v{s}, v{s}\ns_nop 0")
        bf16r(s)
        A(f"v_rcp_f32 v{s}, v{s}\ns_nop 0\nv_mul_f32 v{own}, v{own}, v{s}\nv_cvt_pk_bf16_f32 v{own}, v{own}, v{own}")
    def matvec8(src, wbase, n, lo, hi, ta, tb):
        A("s_nop 1")
        for t in range(n): A(f"v_mov_b32_dpp v{tb+t}, v{src} row_newbcast:{lo(t)} row_mask:0xf bank_mask:0x3")
        for t in range(n): A(f"v_mov_b32_dpp v{tb+t}, v{src} row_newbcast:{hi(t)} row_mask:0xf bank_mask:0xc")
        for t in range(n + 1):
            if t < n:
                for r in range(4): A(f"v_and_b32 v{ta + 4*(t&1) + r}, v{tb+t}, v{MASK+r}")
            else:
                A("s_nop 0")
            if t > 0:
                c = "0" if t == 1 else r4(ACC)
                A(f"v_mfma_f32_16x16x32_bf16 {r4(ACC)}, {r4(ta + 4*((t-1)&1))}, {r4(wbase + 4*(t-1))}, {c}")
    def reduce16(dst, t0):
        for k in range(4): A(f"ds_read_b128 {r4(t0+4*k)}, v28 offset:{256*k}")
        A("s_waitcnt lgkmcnt(2)")
        A(f"v_pk_add_f32 {r2(t0)}, {r2(t0)}, {r2(t0+4)}\nv_pk_add_f32 {r2(t0+2)}, {r2(t0+2)}, {r2(t0+6)}")
        A("s_waitcnt lgkmcnt(0)")
        A(f"v_pk_add_f32 {r2(t0+8)}, {r2(t0+8)}, {r2(t0+12)}\nv_pk_add_f32 {r2(t0+10)}, {r2(t0+10)}, {r2(t0+14)}")
        A(f"v_pk_add_f32 {r2(t0)}, {r2(t0)}, {r2(t0+8)}\nv_pk_add_f32 {r2(t0+2)}, {r2(t0+2)}, {r2(t0+10)}")
        scatter4(dst, t0)
    def scatter4(dst, t0):
        A(f"s_nop 1\nv_permlane32_swap_b32 v{t0}, v{t0+2}\nv_permlane32_swap_b32 v{t0+1}, v{t0+3}")
        A(f"v_add_f32 v{t0}, v{t0}, v{t0+2}\nv_add_f32 v{t0+1}, v{t0+1}, v{t0+3}")
        A(f"s_nop 1\nv_permlane16_swap_b32 v{t0}, v{t0+1}\nv_add_f32 v{dst}, v{t0}, v{t0+1}")
    def poll(name, loads, regs, t):
        A(f"{name}:")
        for s in loads: A(s)
        A("s_add_u32 s41, s41, 1\ns_cmp_gt_u32 s41, 0x40000\ns_cbranch_scc1 DONE")
        A("s_waitcnt vmcnt(0)")
        check(regs, t)
        A(f"s_cbranch_vccnz {name}")
    def check(regs, t):
        rs = list(regs)
        if len(rs) == 1:
            A(f"v_cmp_ne_u32 vcc, s59, v{rs[0]}"); return
        for r in rs: A(f"v_xor_b32 v{r}, v{TAGV}, v{r}")
        A(f"v_or3_b32 v{t}, v{rs[0]}, v{rs[1]}, v{rs[2]}")
        rest = rs[3:]
        if len(rest) >= 4:
            A(f"v_or3_b32 v{t+1}, v{rest[0]}, v{rest[1]}, v{rest[2]}"); rest = rest[3:] + [t + 1]
        while len(rest) >= 2:
            A(f"v_or3_b32 v{t}, v{t}, v{rest[0]}, v{rest[1]}"); rest = rest[2:]
        assert len(rest) == 1
        A(f"v_bitop3_b32 v{t}, v{t}, v{rest[0]}, s58 bitop3:0xa8\nv_cmp_ne_u32 vcc, 0, v{t}")
    def clean(x): A(f"v_bfi_b32 v{x}, s58, v{TAGV}, v{x}")
    def publish128(lds, addr, t0):
        for k in range(8): A(f"ds_read_b128 {r4(t0+4*k)}, v12 offset:{lds + 512*k}")
        for k in range(0, 8, 2):
            A(f"s_waitcnt lgkmcnt({6-k})")
            for i in (0, 2): A(f"v_pk_add_f32 {r2(t0+4*k+i)}, {r2(t0+4*k+i)}, {r2(t0+4*k+4+i)}")
        for a, b in ((0, 8), (16, 24), (0, 16)):
            for i in (0, 2): A(f"v_pk_add_f32 {r2(t0+a+i)}, {r2(t0+a+i)}, {r2(t0+b+i)}")
        for i in range(4): clean(t0 + i)
        A(f"global_store_dwordx4 {addr}, {r4(t0)}, s[26:27] sc1")
    lb = [f"global_load_dwordx4 {r4(W1+4*t)}, v6, s[12:13] offset:{1024*t-4096}{ntw}" for t in range(8)]
    lc = [f"global_load_dwordx4 {r4(W1+4*t)}, v[6:7], off{ntw}" + ("\nv_lshl_add_u64 v[6:7], v[6:7], 0, s[44:45]" if t < 7 else "") for t in range(8)]
    lc += [f"global_load_dwordx4 {r4(W2+4*t)}, v{8 + (t >> 1)}, s[20:21] offset:{4096*(t&1)-4096}{ntw}" for t in range(4)]
    def role_loads(pos):
        for role, lst, plan in ((1, lb, o["rb"]), (2, lc, o["rc"])):
            n = (list(plan) + [99])[pos]
            if n and lst and not o.get("nowt"):
                A(f"s_cmp_lg_u32 s34, {role}\ns_cbranch_scc1 SKIP{role}_{pos}")
                for _ in range(min(n, len(lst))): A(lst.pop(0))
                A(f"SKIP{role}_{pos}:")

    hdr = open("cdna_kernels/" + KN[:-7] + ".s.ref").read().split("; Override launch")[0]
    L.append(hdr + "; @launch grid=(256,1,1) block=(512,1,1) lds=20480")
    L.append(f'.amdgcn_target "amdgcn-amd-amdhsa--gfx950"\n.text\n.globl {KN}\n.p2align 8\n.type {KN},@function\n{KN}:')
    XB = ["s_lshl_b32 s33, s31, 1\nv_add_u32 v14, s33, v11\nv_and_b32 v14, 15, v14\nv_lshl_add_u32 v14, v14, 2, v10\nv_lshl_add_u32 v14, v1, 6, v14\nv_lshlrev_b32 v14, 1, v14\ns_lshl_b32 s40, s31, 16",
          "s_lshl_b32 s33, s31, 6\nv_and_b32 v14, 1, v11\nv_lshl_add_u32 v14, v14, 2, v10\nv_lshl_add_u32 v14, v1, 3, v14\nv_add_lshl_u32 v14, v14, s33, 1\ns_lshl_b32 s40, s31, 19"]
    NQ = 2 if o["qx"] else 16
    stamp(0)
    if o.get("dbg"): A("s_memtime s[92:93]")
    A("""
    s_load_dwordx8 s[4:11], s[0:1], 0
    s_load_dwordx16 s[12:27], s[0:1], 32
    s_cmp_ge_u32 s2, 256
    s_cbranch_scc1 EXIT
    s_and_b32 s28, s2, 7
    s_lshr_b32 s29, s2, 3
    s_lshr_b32 s33, s29, 3
    s_lshl2_add_u32 s30, s28, s33
    s_and_b32 s31, s29, 7
    v_lshrrev_b32 v1, 6, v0
    v_and_b32 v0, 63, v0
    v_readfirstlane_b32 s32, v1
    v_lshrrev_b32 v10, 4, v0
    v_and_b32 v11, 15, v0
    v_lshlrev_b32 v12, 4, v0
    v_lshlrev_b32 v13, @QW@, v1
    v_lshl_add_u32 v13, v10, 13, v13
    v_lshl_add_u32 v13, v11, 4, v13
    @XB@
    v_lshlrev_b32 v4, 14, v1
    v_bfe_u32 v2, v0, 2, 2
    v_lshl_add_u32 v2, v2, 8, v4
    v_lshl_add_u32 v2, v10, 6, v2
    v_and_b32 v3, 3, v0
    v_lshl_add_u32 v2, v3, 4, v2
    v_add_u32 v4, v12, v4
    s_mul_i32 s56, s32, @RA@
    s_mul_i32 s33, s31, @RB@
    s_add_u32 s56, s56, s33
    s_mul_i32 s33, s30, @RC@
    s_add_u32 s56, s56, s33
    s_and_b32 s56, s56, 15
    s_lshl_b32 s56, s56, 10
    s_mov_b32 s57, s56
    s_mov_b32 s50, 0x20000
    s_mov_b32 s51, 0x20000
    s_mov_b32 s54, 0x20000
    s_mov_b32 s55, 0x20000
    s_lshl_b32 s42, s30, 23
    s_lshl_b32 s43, s31, 17
    s_add_u32 s42, s42, s43
    s_add_u32 s42, s42, 0x700000
    s_lshl_b32 s33, s30, 8
    s_mov_b32 s38, 0x400000
    s_mov_b32 s39, 0x20000
    s_sub_u32 s38, s38, s33
    s_mov_b32 s41, 0
    s_waitcnt lgkmcnt(0)
    s_add_u32 s36, s10, s33
    s_addc_u32 s37, s11, 0
    """.replace("@QW@", "16" if o["qx"] else "19").replace("@XB@", XB[o["qx"]]).replace("@RA@", str(o["rot"][0])).replace("@RB@", str(o["rot"][1])).replace("@RC@", str(o["rot"][2])))
    issue("xa", "global_load_dwordx4 v[16:19], v12, s[4:5]")
    A(f"s_load_dword s59, s[26:27], {EPOCH}")
    issue("xb", "global_load_short_d16_hi v15, v14, s[4:5]")
    A("s_add_u32 s48, s6, s42\ns_addc_u32 s49, s7, 0\ns_add_u32 s52, s8, s42\ns_addc_u32 s53, s9, 0")
    def ldq(j):
        issue(f"q{j}", f"buffer_load_dwordx4 {r4(WQ+4*j)}, v13, s[36:39], s40 offen{ntq}")
        if j < NQ - 1: A("s_add_u32 s40, s40, 0x8000" + ("" if o["qx"] else "\ns_and_b32 s40, s40, 0x7ffff"))
    def ldk(j): issue(f"k{j}", f"buffer_load_dwordx4 {r4(KR+4*j)}, v2, s[48:51], s56 offen{nt}\ns_add_u32 s56, s56, 0x400\ns_and_b32 s56, s56, 0x3fff")
    def ldv(j):
        issue(f"v{j}", f"buffer_load_dwordx4 {r4(VR+4*j)}, v4, s[52:55], s57 offen{nt}\ns_add_u32 s57, s57, 0x400\ns_and_b32 s57, s57, 0x3fff")
    pend = ["q0", "q1"]
    qs = [f"q{j}" for j in range(2, NQ)]; acc = 0
    num, den = o.get("qmix", (1, 1))
    for e in [f"k{j}" for j in range(16)] + [f"v{j}" for j in range(16)]:
        pend.append(e); acc += num
        while acc >= den and qs: pend.append(qs.pop(0)); acc -= den
    GQ = "global_load_dwordx4 v[16:19], v14, s[26:27] sc1"
    if o["qx"]: pend.insert(2 + o["qg"], "g0")
    def nxt(n=1):
        for _ in range(n):
            if pend:
                e = pend.pop(0); {"q": ldq, "k": ldk, "v": ldv, "g": lambda j: issue("g0", GQ)}[e[0]](int(e[1:]))
    def upto(tag, ahead):
        while tag in pend: nxt()
        while pend and len(vm) - 1 - vm.index(tag) < ahead: nxt()
    nxt(o["depth"] - 2)
    stamp(1)
    A(f"""
    s_mov_b32 s34, 0
    s_mov_b32 s35, s29
    s_cmp_lt_u32 s29, 8
    s_cselect_b32 s34, 1, s34
    s_sub_u32 s33, s2, 64
    s_cmp_lt_u32 s33, 43
    s_cselect_b32 s34, 2, s34
    s_cselect_b32 s35, s33, s35
    s_sub_u32 s33, s2, 128
    s_cmp_lt_u32 s33, 32
    s_cselect_b32 s34, 3, s34
    s_cselect_b32 s35, s33, s35
    s_mov_b32 s44, {4*2752}
    s_mov_b32 s45, 0
    v_and_b32 v20, 1, v0
    v_lshlrev_b32 v20, 4, v20
    v_mov_b32 v21, 0xffff
    v_lshlrev_b32 v20, v20, v21
    v_bfe_u32 v21, v0, 1, 2
    """)
    for r in range(4):
        A(f"v_cmp_eq_u32 vcc, {r}, v21\ns_nop 1\nv_cndmask_b32 v{MASK+r}, 0, v20, vcc")
    A(f"""
    v_lshrrev_b32 v20, 3, v0
    v_and_b32 v21, 7, v0
    v_and_b32 v22, 1, v20
    s_lshl_b32 s33, s30, 3
    s_add_u32 s33, s33, s31
    s_mul_i32 s46, s33, {REC}
    v_add_u32 v24, s46, v12
    v_lshlrev_b32 v25, 2, v0
    v_lshlrev_b32 v26, 9, v1
    v_lshl_add_u32 v26, v11, 5, v26
    v_lshl_add_u32 v26, v10, 4, v26
    v_lshl_add_u32 v27, v1, 1, v22
    v_lshlrev_b32 v27, 8, v27
    v_lshl_add_u32 v27, v21, 5, v27
    v_and_b32 v23, 1, v10
    v_lshl_add_u32 v27, v23, 4, v27
    v_lshlrev_b32 v28, 10, v10
    v_lshl_add_u32 v28, v11, 4, v28
    v_add_u32 v28, {L_Y}, v28
    v_mov_b32 v6, 0
    v_mov_b32 v7, 0
    v_mov_b32 v8, 0
    v_mov_b32 v9, 0
    v_mov_b32 v29, 0
    v_mov_b32 v30, 0
    v_mov_b32 v31, 0
    s_lshl_b32 s33, s33, 10
    s_add_u32 s33, s33, {REG_Q}
    v_add_u32 v5, s33, v12
    s_lshl3_add_u32 s33, s30, s32
    s_lshl_b32 s33, s33, 10
    s_add_u32 s33, s33, {REG_Q}
    v_add_u32 v14, s33, v12
    s_cmp_eq_u32 s34, 2
    s_cbranch_scc1 ADDR_C
    s_cmp_eq_u32 s34, 3
    s_cbranch_scc1 ADDR_D
    s_lshl_b32 s33, s28, 19
    s_lshl_b32 s42, s35, 7
    s_add_u32 s33, s33, s42
    s_add_u32 s33, s33, 0x1000
    v_lshlrev_b32 v6, 16, v1
    v_lshl_add_u32 v6, v20, 13, v6
    v_lshl_add_u32 v6, v21, 4, v6
    v_add_u32 v6, s33, v6
    s_lshr_b32 s33, s32, 1
    s_lshl2_add_u32 s33, s28, s33
    s_mul_i32 s33, s33, {8*REC}
    v_mul_u32_u24 v30, {REC}, v21
    v_add_u32 v30, s33, v30
    s_and_b32 s42, s32, 1
    s_lshl_b32 s42, s42, 8
    s_add_u32 s33, s33, s42
    s_add_u32 s33, s33, {4*REC}
    v_add_u32 v29, s33, v25
    s_lshl3_add_u32 s33, s28, s35
    s_lshl_b32 s33, s33, 8
    s_add_u32 s33, s33, {REG_B}
    v_add_u32 v31, s33, v25
    s_branch ADDR_DONE
    ADDR_C:
    v_lshl_add_u32 v6, v22, 5, v10
    v_lshl_add_u32 v6, v1, 6, v6
    v_mul_u32_u24 v6, 2752, v6
    v_and_b32 v7, 3, v0
    v_lshl_add_u32 v6, v7, 4, v6
    s_lshl_b32 s33, s35, 6
    v_add_u32 v6, s33, v6
    v_mov_b32 v7, 0
    v_cmp_gt_u32 vcc, 4, v21
    v_mov_b32 v8, s16
    v_mov_b32 v9, s17
    v_mov_b32 v29, s18
    v_mov_b32 v30, s19
    v_cndmask_b32 v8, v29, v8, vcc
    v_cndmask_b32 v9, v30, v9, vcc
    v_lshl_add_u64 v[6:7], v[6:7], 0, v[8:9]
    v_lshl_add_u32 v8, v22, 4, v10
    v_lshlrev_b32 v8, 10, v8
    v_lshl_add_u32 v8, v1, 7, v8
    v_lshl_add_u32 v8, v21, 4, v8
    s_lshl_b32 s33, s35, 15
    s_add_u32 s33, s33, 0x1000
    v_add_u32 v8, s33, v8
    v_add_u32 v9, 0x2000, v8
    v_lshl_add_u32 v29, v1, 8, v25
    v_add_u32 v29, {REG_B + 4096}, v29
    v_lshl_add_u32 v30, v11, 2, v10
    v_lshl_add_u32 v30, v1, 6, v30
    v_lshlrev_b32 v30, 1, v30
    s_lshl_b32 s33, s35, 11
    s_add_u32 s33, s33, {REG_C}
    v_lshlrev_b32 v31, 8, v1
    v_lshl_add_u32 v31, v21, 5, v31
    v_lshl_add_u32 v31, v23, 5, v31
    v_lshrrev_b32 v20, 5, v0
    v_lshl_add_u32 v31, v20, 4, v31
    v_add_u32 v31, s33, v31
    s_branch ADDR_DONE
    ADDR_D:
    v_and_b32 v20, 3, v0
    v_lshrrev_b32 v6, 2, v0
    v_lshlrev_b32 v6, 11, v6
    v_lshl_add_u32 v6, v20, 4, v6
    s_lshl_b32 s33, s35, 6
    s_add_u32 s33, s33, {REG_C}
    v_add_u32 v6, s33, v6
    v_add_u32 v7, 0x8000, v6
    v_add_u32 v8, 0x10000, v6
    s_and_b32 s33, s35, 3
    s_lshl_b32 s33, s33, 2
    v_lshl_add_u32 v29, v10, 4, v20
    v_add_u32 v29, s33, v29
    v_lshlrev_b32 v29, 2, v29
    s_lshr_b32 s33, s35, 2
    s_lshl_b32 s33, s33, 8
    s_add_u32 s33, s33, {REG_B + 4096}
    v_add_u32 v29, s33, v29
    v_lshl_add_u32 v30, v20, 2, v10
    v_lshlrev_b32 v30, 1, v30
    s_lshl_b32 s33, s35, 5
    v_add_u32 v30, s33, v30
    v_lshrrev_b32 v9, 1, v10
    v_lshl_add_u32 v9, v9, 2, v20
    v_lshl_add_u32 v9, v9, 1, v23
    v_lshl_add_u32 v31, v9, 1, s33
    v_and_b32 v21, 3, v9
    v_lshrrev_b32 v9, 2, v9
    v_lshl_add_u32 v9, v21, 4, v9
    v_lshlrev_b32 v9, 2, v9
    ADDR_DONE:
    s_waitcnt lgkmcnt(0)
    s_add_u32 s59, s59, 1
    s_mov_b32 s58, 0xff
    s_and_b32 s33, s59, s58
    v_mov_b32 v{TAGV}, s33
    """)
    if o["warm"]:
        A("s_mov_b64 exec, 0\n@WARMTREE@\nWARM_RET:\ns_mov_b64 exec, -1")
    wait("xb")
    stamp(2)
    for i in range(4):
        A(f"v_lshlrev_b32 v{BQ+2*i}, 16, v{16+i}\nv_and_b32 v{BQ+2*i+1}, 0xffff0000, v{16+i}")
    A("v_and_b32 v15, 0xffff0000, v15")
    layernorm(BQ, 15, BQ + 8)
    A("s_nop 1")
    pad()
    for j in range(NQ + 1):
        if j < NQ:
            for r in range(4):
                A(f"v_and_b32_dpp v{BQ+4*(j&1)+r}, v15, v{MASK+r} row_newbcast:{j} {FULL}")
        else: A("s_nop 1")
        if j > 0:
            upto(f"q{j-1}", o["depth"] - 1); wait(f"q{j-1}")
            c = "0" if j == 1 else r4(ACC)
            A(f"v_mfma_f32_16x16x32_bf16 {r4(ACC)}, {r4(BQ+4*((j-1)&1))}, {r4(WQ+4*(j-1))}, {c}")
    A(f"s_nop 7\ns_mov_b32 exec_hi, 0\nds_write_b128 v26, {r4(ACC)} offset:{L_Q1 if o['qx'] else L_Q}\ns_mov_b32 exec_hi, -1")
    if o["qx"]:
        A("s_waitcnt lgkmcnt(0)\ns_barrier\ns_cmp_lg_u32 s32, 0\ns_cbranch_scc1 NO_QPUB\nv_lshlrev_b32 v20, 3, v0")
        T0 = WQ + 8
        for k in range(8): A(f"ds_read_b64 {r2(T0+2*k)}, v20 offset:{L_Q1 + 512*k}")
        A("s_waitcnt lgkmcnt(0)")
        for a, b in ((0, 2), (4, 6), (8, 10), (12, 14), (0, 4), (8, 12), (0, 8)): A(f"v_pk_add_f32 {r2(T0+a)}, {r2(T0+a)}, {r2(T0+b)}")
        A(f"v_mov_b32 v{T0+2}, s59\nv_mov_b32 v{T0+3}, s59\nglobal_store_dwordx4 v5, {r4(T0)}, s[26:27] sc1\nNO_QPUB:")
        if "depth2" in o: o["depth"] = o["depth2"]
    role_loads(0)
    if o["qx"]:
        upto("g0", o["depth"] - 1); wait("g0")
        check([18], 20)
        A("s_cbranch_vccz Q_OK")
        poll("POLL_Q", ["global_load_dwordx4 v[16:19], v14, s[26:27] sc1"], [18], 20)
        A(f"Q_OK:\nv_lshlrev_b32 v20, 3, v0\nv_lshl_add_u32 v20, v1, 9, v20\nds_write_b64 v20, v[16:17] offset:{L_Q}")
    nxt(o.get("pre_bar", 2))
    A(f"""
    v_bfe_u32 v21, v0, 2, 2
    v_and_b32 v20, 3, v0
    v_lshl_add_u32 v20, v10, 2, v20
    v_lshlrev_b32 v20, 5, v20
    v_lshl_add_u32 v20, v21, 10, v20
    s_waitcnt lgkmcnt(0)
    s_barrier
    """)
    stamp(3)
    pad()
    for k in range(4): A(f"ds_read_b128 {r4(BQ+4*k)}, v20 offset:{L_Q + 512*(k>>1) + 16*(k&1)}")
    A("s_waitcnt lgkmcnt(0)")
    for i in range(0, 8, 2): A(f"v_pk_add_f32 {r2(BQ+i)}, {r2(BQ+i)}, {r2(BQ+8+i)}")
    for r in (4, 8):
        for i in range(8): A(f"v_add_f32_dpp v{BQ+i}, v{BQ+i}, v{BQ+i} row_ror:{r} {FULL}")
    for i in range(4): A(f"v_cvt_pk_bf16_f32 v{16+i}, v{BQ+2*i}, v{BQ+2*i+1}")
    for jj in range(4):
        A(f"v_cmp_eq_u32 vcc, {jj}, v21\ns_nop 1")
        for r in range(4): A(f"v_cndmask_b32 v{BQ+4*jj+r}, 0, v{16+r}, vcc")
    A("s_nop 1")
    DS = [16, 248, 252, ACC]
    for t in range(4):
        for jj in range(4):
            upto(f"k{4*t+jj}", o["depth"] - 1); wait(f"k{4*t+jj}")
            c = "0" if jj == 0 else r4(DS[t])
            A(f"v_mfma_f32_16x16x32_bf16 {r4(DS[t])}, {r4(KR+16*t+4*jj)}, {r4(BQ+4*jj)}, {c}")
            if o.get("qk_issue", 1): nxt()
    nxt(99)
    stamp(4)
    role_loads(1)
    A("s_nop 7")
    S = BQ
    for r in range(4):
        for t in range(4):
            if r == 0: A(f"v_mov_b32_dpp v{S+t}, v{DS[t]} quad_perm:[0,0,0,0] {FULL}")
            else: A(f"v_add_f32_dpp v{S+t}, v{DS[t]+r}, v{S+t} quad_perm:[{r},{r},{r},{r}] {FULL}")
    for t in range(4):
        bf16r(S + t); A(f"v_mul_f32 v{S+t}, 0x3db504f3, v{S+t}"); bf16r(S + t)
    pad()
    A(f"v_max3_f32 v16, v{S}, v{S+1}, v{S+2}\nv_max_f32 v16, v16, v{S+3}")
    wave_allreduce("v_max_f32", 16, 18, (8, 4))
    for t in range(4): A(f"v_sub_f32 v{S+t}, v{S+t}, v16\nv_mul_f32 v{S+t}, 0x3fb8aa3b, v{S+t}\nv_exp_f32 v{S+t}, v{S+t}")
    A(f"s_nop 0\nv_add_f32 v17, v{S}, v{S+1}\nv_add_f32 v18, v{S+2}, v{S+3}\nv_add_f32 v17, v17, v18")
    wave_allreduce("v_add_f32", 17, 18, (8, 4))
    A(f"""
    v_lshlrev_b32 v20, 3, v1
    v_and_b32 v21, 7, v0
    v_lshlrev_b32 v21, 3, v21
    s_mov_b64 exec, 1
    ds_write_b64 v20, v[16:17] offset:{L_ML}
    s_mov_b64 exec, -1
    s_waitcnt lgkmcnt(0)
    s_barrier
    ds_read_b64 v[18:19], v21 offset:{L_ML}
    s_waitcnt lgkmcnt(0)
    v_max_f32_dpp v20, v18, v18 row_half_mirror {FULL}
    s_nop 1
    v_max_f32_dpp v20, v20, v20 quad_perm:[1,0,3,2] {FULL}
    s_nop 1
    v_max_f32_dpp v20, v20, v20 quad_perm:[2,3,0,1] {FULL}
    v_sub_f32 v16, v16, v20
    v_sub_f32 v18, v18, v20
    v_mul_f32 v16, 0x3fb8aa3b, v16
    v_mul_f32 v18, 0x3fb8aa3b, v18
    v_exp_f32 v16, v16
    v_exp_f32 v18, v18
    s_nop 0
    v_mul_f32 v21, v18, v19
    """)
    for t in range(4): A(f"v_mul_f32 v{S+t}, v{S+t}, v16\nv_cvt_pk_bf16_f32 v{S+t}, v{S+t}, v{S+t}")
    A(f"""
    v_add_f32_dpp v21, v21, v21 row_half_mirror {FULL}
    s_nop 1
    v_add_f32_dpp v21, v21, v21 quad_perm:[1,0,3,2] {FULL}
    s_nop 1
    v_add_f32_dpp v21, v21, v21 quad_perm:[2,3,0,1] {FULL}
    v_bfi_b32 v20, s58, v{TAGV}, v20
    v_bfi_b32 v21, s58, v{TAGV}, v21
    v_mov_b32 v22, v{TAGV}
    v_mov_b32 v23, v{TAGV}
    s_mov_b64 exec, 1
    global_store_dwordx4 v24, v[20:23], s[26:27] offset:512 sc1
    s_mov_b64 exec, -1
    """)
    vm.append("ml")
    stamp(5)
    pad()
    for j in range(16):
        for r in range(4):
            A(f"v_and_b32_dpp v{KR+4*j+r}, v{S+(j>>2)}, v{MASK+r} row_newbcast:{4*(j&3)} {FULL}")
    A("s_nop 0")
    pad()
    def pv(extra):
        for j in range(16):
            n = len(vm) - 1 - vm.index(f"v{j}") + extra
            c = "0" if j == 0 else r4(ACC)
            A(f"s_waitcnt vmcnt({n})\nv_mfma_f32_16x16x32_bf16 {r4(ACC)}, {r4(KR+4*j)}, {r4(VR+4*j)}, {c}")
    var = [(r, p[1]) for r, p in ((1, o["rb"]), (2, o["rc"])) if p[1] and not o.get("nowt")]
    for r, n in var:
        A(f"s_cmp_lg_u32 s34, {r}\ns_cbranch_scc1 PV_NOT{r}"); pv(n); A(f"s_branch PV_DONE\nPV_NOT{r}:")
    pv(0)
    A("PV_DONE:")
    stamp(6)
    A(f"s_nop 6\ns_mov_b32 exec_hi, 0\nds_write_b128 v26, {r4(ACC)} offset:{L_O}\ns_waitcnt lgkmcnt(0)\ns_barrier")
    A("s_cmp_lg_u32 s32, 0\ns_cbranch_scc1 NO_PUB")
    publish128(L_O, "v24", KR)
    A("NO_PUB:\ns_mov_b32 exec_hi, -1")
    stamp(7)
    A("s_cmp_eq_u32 s34, 0\ns_cbranch_scc1 DONE")
    role_loads(2)
    pad()
    A("s_cmp_lg_u32 s34, 3\ns_cbranch_scc1 CNT_CHECK\ns_cmp_lg_u32 s32, 0\ns_cbranch_scc1 DONE\nCNT_CHECK:")
    A("""
    s_cmp_lg_u32 s34, 1
    s_cbranch_scc1 ROLE_CD
    """)
    G = VR
    poll("POLL_ML", ["global_load_dwordx4 v[16:19], v30, s[26:27] offset:512 sc1"], range(16, 20), 20)
    A(f"""
    v_and_b32 v18, 0xffff0000, v16
    v_mov_b32 v19, v17
    s_nop 0
    v_max_f32_dpp v20, v18, v18 row_half_mirror {FULL}
    s_nop 1
    v_max_f32_dpp v20, v20, v20 quad_perm:[1,0,3,2] {FULL}
    s_nop 1
    v_max_f32_dpp v20, v20, v20 quad_perm:[2,3,0,1] {FULL}
    v_sub_f32 v18, v18, v20
    v_mul_f32 v18, 0x3fb8aa3b, v18
    v_exp_f32 v18, v18
    s_nop 0
    v_mul_f32 v21, v18, v19
    s_nop 1
    v_add_f32_dpp v21, v21, v21 row_half_mirror {FULL}
    s_nop 1
    v_add_f32_dpp v21, v21, v21 quad_perm:[1,0,3,2] {FULL}
    s_nop 1
    v_add_f32_dpp v21, v21, v21 quad_perm:[2,3,0,1] {FULL}
    v_rcp_f32 v21, v21
    s_nop 0
    v_mul_f32 v18, v18, v21
    s_nop 1
    """)
    for s in range(8): A(f"v_mov_b32_dpp v{KR+8+s}, v18 row_newbcast:{s} {FULL}")
    poll("POLL_A", [f"global_load_dword v{G+s}, v29, s[26:27] offset:{REC*(s-4)} sc1" for s in range(8)],
         range(G, G + 8), 20)
    stamp(8)
    A(f"v_pk_mul_f32 v[16:17], {r2(KR+8)}, {r2(G)}")
    for s in range(2, 8, 2): A(f"v_pk_fma_f32 v[16:17], {r2(KR+8+s)}, {r2(G+s)}, v[16:17]")
    A("v_add_f32 v16, v16, v17\nv_cvt_pk_bf16_f32 v16, v16, v16")
    pad()
    matvec8(16, W1, 8, lambda t: t, lambda t: 8 + t, BQ, BQ + 8)
    wr_y = f"s_mov_b32 exec_lo, 0x00ff00ff\ns_mov_b32 exec_hi, 0xff00ff00\ns_nop 5\nds_write_b128 v27, {r4(ACC)} offset:{L_Y}\ns_mov_b64 exec, -1\ns_waitcnt lgkmcnt(0)\ns_barrier"
    A(wr_y)
    A("s_cmp_lg_u32 s32, 0\ns_cbranch_scc1 DONE")
    reduce16(16, KR)
    clean(16)
    A("s_nop 1")
    for i in (1, 2, 3): A(f"v_mov_b32_dpp v{16+i}, v16 quad_perm:[{i},{i},{i},{i}] {FULL}")
    A("s_mov_b32 exec_lo, 0x11111111\ns_mov_b32 exec_hi, 0x11111111\nglobal_store_dwordx4 v31, v[16:19], s[26:27] sc1")
    stamp(9)
    A("s_branch DONE")
    A("ROLE_CD:\nv_add_u32 v20, 0x2000, v29\nglobal_load_short_d16_hi v15, v30, s[4:5]")
    pad()
    poll("POLL_B", [f"global_load_dword v{G+s}, v{(29, 20)[s>>2]}, s[26:27] offset:{2048*(s&3)-4096} sc1" for s in range(8)],
         range(G, G + 8), 22)
    stamp(8)
    for a, b in ((0, 2), (4, 6), (0, 4)): A(f"v_pk_add_f32 {r2(G+a)}, {r2(G+a)}, {r2(G+b)}")
    A(f"v_add_f32 v16, v{G}, v{G+1}\nv_and_b32 v15, 0xffff0000, v15")
    bf16r(16)
    A("v_add_f32 v15, v15, v16")
    bf16r(15)
    A("s_cmp_eq_u32 s34, 3\ns_cbranch_scc1 ROLE_D")
    A(f"""
    v_lshl_add_u32 v20, v1, 8, v25
    v_lshlrev_b32 v21, 5, v0
    ds_write_b32 v20, v15 offset:{L_H}
    v_mov_b32 v19, 0xff800000
    v_cmp_gt_u32 vcc, 8, v11
    s_waitcnt lgkmcnt(0)
    s_barrier
    ds_read_b128 {r4(KR)}, v21 offset:{L_H}
    ds_read_b128 {r4(KR+4)}, v21 offset:{L_H+16}
    v_cndmask_b32 v19, v19, 0, vcc
    s_waitcnt lgkmcnt(0)
    """)
    stamp(11)
    layernorm(KR, 15, KR + 8)
    stamp(12)
    pad()
    matvec8(15, W1, 8, lambda t: t, lambda t: 8 + t, BQ, BQ + 8)
    A(wr_y)
    stamp(13)
    reduce16(16, KR)
    bf16r(16)
    A(f"v_max_f32 v16, v16, v19\ns_nop 1\nv_mul_f32_dpp v16, v16, v16 row_ror:8 {FULL}\nv_cvt_pk_bf16_f32 v16, v16, v16")
    pad()
    matvec8(16, W2, 4, lambda t: t, lambda t: 4 + t, BQ, BQ + 8)
    A(f"""
    s_nop 7
    v_permlane32_swap_b32 v{ACC}, v{ACC+2}
    v_permlane32_swap_b32 v{ACC+1}, v{ACC+3}
    s_nop 1
    v_add_f32_dpp v16, v{ACC+2}, v{ACC} row_ror:8 {FULL}
    v_add_f32_dpp v17, v{ACC+3}, v{ACC+1} row_ror:8 {FULL}
    v_bfi_b32 v16, s58, v{TAGV}, v16
    v_bfi_b32 v17, s58, v{TAGV}, v17
    s_nop 0
    v_mov_b32_dpp v18, v16 quad_perm:[1,1,3,3] {FULL}
    v_mov_b32_dpp v19, v17 quad_perm:[1,1,3,3] {FULL}
    s_mov_b32 exec_lo, 0x00550055
    s_mov_b32 exec_hi, 0x00550055
    global_store_dwordx4 v31, v[16:19], s[26:27] sc1
    s_mov_b64 exec, -1
    """)
    stamp(9)
    A("s_branch DONE")
    A("ROLE_D:")
    A("ds_bpermute_b32 v15, v9, v15")
    A("s_waitcnt lgkmcnt(0)")
    pad()
    poll("POLL_C", [f"global_load_dwordx4 {r4(G)}, v6, s[26:27] sc1", f"global_load_dwordx4 {r4(G+4)}, v7, s[26:27] sc1",
                    "".join(f"v_mov_b32 v{G+8+i}, v{TAGV}\n" for i in range(4)) + f"s_mov_b32 exec_hi, 0xfff\nglobal_load_dwordx4 {r4(G+8)}, v8, s[26:27] sc1\ns_mov_b32 exec_hi, -1"],
         range(G, G + 12), 22)
    stamp(9)
    for b in (4, 8):
        for i in (0, 2): A(f"v_pk_add_f32 {r2(G+i)}, {r2(G+i)}, {r2(G+b+i)}")
    scatter4(16, G)
    A(f"s_nop 1\nv_add_f32_dpp v16, v16, v16 row_ror:4 {FULL}\ns_nop 1\nv_add_f32_dpp v16, v16, v16 row_ror:8 {FULL}")
    bf16r(16)
    A("v_add_f32 v16, v16, v15\nv_cvt_pk_bf16_f32 v16, v16, v16\ns_mov_b32 exec_lo, 0x000f000f\ns_mov_b32 exec_hi, 0x000f000f")
    A("global_store_short v31, v16, s[22:23]")
    A(f"s_cmp_lg_u32 s35, 0\ns_cbranch_scc1 DONE\ns_mov_b64 exec, 1\nv_mov_b32 v20, {EPOCH}\nv_mov_b32 v21, s59\nglobal_store_dword v20, v21, s[26:27]")
    A("DONE:")
    if o["stamps"]:
        A("s_waitcnt vmcnt(0)")
        stamp(10)
        A(f"s_mov_b32 s88, s41\ns_mov_b32 s90, s34\ns_mov_b64 exec, 1\ns_lshl3_add_u32 s33, s2, s32\ns_lshl_b32 s33, s33, 6\ns_add_u32 s33, s33, {DIAG}\nv_mov_b32 v20, s33\ns_waitcnt lgkmcnt(0)")
        for i in range(16): A(f"v_mov_b32 v21, s{60+2*i}\nglobal_store_dword v20, v21, s[26:27] offset:{4*i}")
    if o.get("dbg"):
        A("s_cmp_lg_u32 s2, 128\ns_cbranch_scc1 EXIT\ns_cmp_lg_u32 s32, 0\ns_cbranch_scc1 EXIT\ns_memtime s[94:95]\ns_waitcnt lgkmcnt(0)\nv_mov_b32 v20, 0")
        for i in range(1, 11): A(f"s_sub_u32 s33, s{60+2*i}, s60\nv_mov_b32 v21, s33\nglobal_store_dword v20, v21, s[24:25] offset:{4*i}")
        A("s_sub_u32 s33, s94, s92\nv_mov_b32 v21, s33\nglobal_store_dword v20, v21, s[24:25]")
    if o.get("amp"):
        A(f"s_sub_u32 s33, s{60+2*o['amp']}, s60\ns_min_u32 s33, s33, 5000\ns_mul_i32 s33, s33, 20\nAMP:\ns_memrealtime s[94:95]\ns_waitcnt lgkmcnt(0)\ns_sub_u32 s42, s94, s80\ns_cmp_lt_u32 s42, s33\ns_cbranch_scc1 AMP")
    A("EXIT:\ns_endpgm")
    L.append(f""".section .rodata,"a"
.p2align 6
.amdhsa_kernel {KN}
  .amdhsa_next_free_vgpr 256
  .amdhsa_next_free_sgpr 96
  .amdhsa_accum_offset 256
  .amdhsa_group_segment_fixed_size 0
  .amdhsa_kernarg_size 96
  .amdhsa_user_sgpr_count 2
  .amdhsa_user_sgpr_kernarg_segment_ptr 1
  .amdhsa_system_sgpr_workgroup_id_x 1
.end_amdhsa_kernel""")
    txt = "\n".join(L) + "\n"
    txt = txt.replace("@ATOM@", "s_nop 0" if o.get("noatom") else "global_atomic_add v21, v20, s[24:25] sc1")
    if o.get("noatom"): txt = txt.replace("v_cmp_gt_u32 vcc, 32, v23", "v_cmp_gt_u32 vcc, 0, v23")
    if o["warm"]:
        n = npad[0]
        sel = o.get("warm_sel") or [round(i * (n - 1) / 7) for i in range(8)]
        tree = "\n".join(f"    s_cmp_eq_u32 s32, {w}\n    s_cbranch_scc1 PAD{p}" for w, p in enumerate(sel))
        txt = txt.replace("    @WARMTREE@", tree)
    return txt

if __name__ == "__main__":
    out = sys.argv[1]
    kw = {}
    for a in sys.argv[2:]:
        k, v = a.split("=")
        try: v = json.loads(v)
        except Exception: pass
        kw[k] = v
    open(out, "w").write(gen(**kw))
```

```python
import sys, json
KN = "sequential_preLN__sliding_block_cached__glu_gated_reglu__decode_kernel"
DEF = dict(stamps=0, nt=1, ntw=1, av=(1, 0, 0), local=1, first=4, sl=(0, 0, 0), gate=0, wb=(), pf=None, bw=0, od=1, p2=None, pw=0, odd=0, mr=(0, 0), cpb=1, cpc=1, nd=0, nc=0, pre=0, pfm="", qx=1, qg=14, mid=(1, 1, 1, 1), warm=1, ntq=1, sleep=0, depth=6, rot=(1, 3, 5))

REG_A, REC = 0, 640
REG_B, REG_C, DIAG = 0x140000, 0x180000, 0x80000
REG_Q, EPOCH = 0xc0000, 0x7ff00
REG_A2 = 0x100000
L_Q, L_ML, L_O, L_Q1, L_A, L_P, L_CS, L_W = 0, 4096, 4352, 8448, 12544, 15616, 16768, 18432
TAGV = 3
KR, VR, WQ = 32, 96, 160
W1, BT, ML, ONES, WS = 160, 184, 208, 212, 216
BQ = 224
MASK = 240
ACC = 244
FULL = "row_mask:0xf bank_mask:0xf"

def gen(**kw):
    o = dict(DEF); o.update(kw)
    L = []
    def A(s):
        for x in s.split("\n"):
            x = x.strip()
            if x: L.append(x if x.endswith(":") else "    " + x)
    nt = " nt" if o["nt"] else ""
    ntw = " nt" if o["ntw"] else ""
    ntq = " nt" if o["ntq"] else ""
    vm = []
    done = [0]
    def issue(tag, s):
        d = o["depth"]
        if len(vm) - done[0] >= d:
            A(f"s_waitcnt vmcnt({d-1})"); done[0] = len(vm) - (d - 1)
        if o["odd"] and d < 99 and len(vm) - done[0] >= d - o["od"] and len(vm) % o["odd"] == 0:
            A(f"s_bitcmp1_b32 s28, 0\ns_cbranch_scc1 OD{len(vm)}\ns_waitcnt vmcnt({d-1-o['od']})\nOD{len(vm)}:")
        vm.append(tag); A(s)
    def wait(tag, note=True):
        i = max(i for i, t in enumerate(vm) if t == tag)
        if i < done[0]: return
        A(f"s_waitcnt vmcnt({len(vm) - 1 - i})")
        if note: done[0] = i + 1
    def stamp(i):
        if o["stamps"]: A(f"s_memrealtime s[{60+2*i}:{61+2*i}]")
    npad = [0]
    def pad():
        if o["warm"]:
            A(f"PAD{npad[0]}:\ns_cbranch_execz WARM_RET"); npad[0] += 1
    def r4(b): return f"v[{b}:{b+3}]"
    def r2(b): return f"v[{b}:{b+1}]"
    def rows_allreduce(op, x, t):
        A(f"v_mov_b32 v{t}, v{x}\ns_nop 1\nv_permlane16_swap_b32 v{t}, v{x}\n{op} v{x}, v{x}, v{t}")
        A(f"v_mov_b32 v{t}, v{x}\ns_nop 1\nv_permlane32_swap_b32 v{t}, v{x}\n{op} v{x}, v{x}, v{t}")
    def wave_allreduce(op, x, t, rors=(8, 4, 2, 1)):
        for r in rors:
            A(f"s_nop 1\n{op}_dpp v{x}, v{x}, v{x} row_ror:{r} {FULL}")
        rows_allreduce(op, x, t)
    def bf16r(x):
        A(f"v_cvt_pk_bf16_f32 v{x}, v{x}, v{x}\nv_and_b32 v{x}, 0xffff0000, v{x}")
    def layernorm(xs, own, t0):
        s, t, m = t0, t0 + 1, t0 + 2
        A(f"v_add_f32 v{s}, v{xs}, v{xs+1}\nv_add_f32 v{t}, v{xs+2}, v{xs+3}\nv_add_f32 v{m}, v{xs+4}, v{xs+5}")
        A(f"v_add_f32 v{s}, v{s}, v{t}\nv_add_f32 v{t}, v{xs+6}, v{xs+7}\nv_add_f32 v{m}, v{m}, v{t}\nv_add_f32 v{m}, v{m}, v{s}")
        wave_allreduce("v_add_f32", m, t)
        A(f"v_mul_f32 v{m}, 0x3b000000, v{m}")
        for i in range(8): A(f"v_sub_f32 v{xs+i}, v{xs+i}, v{m}")
        A(f"v_mul_f32 v{s}, v{xs}, v{xs}\nv_mul_f32 v{t}, v{xs+1}, v{xs+1}")
        for i in range(2, 8): A(f"v_fmac_f32 v{(s, t)[i & 1]}, v{xs+i}, v{xs+i}")
        A(f"v_add_f32 v{s}, v{s}, v{t}")
        bf16r(m)
        A(f"v_sub_f32 v{own}, v{own}, v{m}")
        bf16r(own)
        wave_allreduce("v_add_f32", s, t)
        A(f"v_mul_f32 v{s}, 0x3b000000, v{s}")
        bf16r(s)
        A(f"v_add_f32 v{s}, 0x3727c5ac, v{s}")
        bf16r(s)
        A(f"v_sqrt_f32 v{s}, v{s}\ns_nop 0")
        bf16r(s)
        A(f"v_rcp_f32 v{s}, v{s}\ns_nop 0\nv_mul_f32 v{own}, v{own}, v{s}\nv_cvt_pk_bf16_f32 v{own}, v{own}, v{own}")
    def colsum(dst, t0, off, extra=()):
        items = [(dst, t0, "v28", off)] + list(extra)
        for d, t, a, f in items: A(f"ds_read_b128 {r4(t)}, {a} offset:{f}")
        for k, (d, t, a, f) in enumerate(items):
            A(f"s_waitcnt lgkmcnt({len(items)-1-k})\nv_pk_add_f32 {r2(t)}, {r2(t)}, {r2(t+2)}")
        for d, t, a, f in items: A(f"v_add_f32 v{t}, v{t}, v{t+1}")
        if len(items) < 3: A("s_nop 1")
        for d, t, a, f in items: A(f"v_add_f32_dpp v{d}, v{t}, v{t} quad_perm:[1,0,3,2] {FULL}")
    def colsum2(dst, t0, off, extra=()):
        items = [(dst, t0, "v28", off)] + list(extra)
        for d, t, a, f in items: A(f"ds_read_b128 {r4(t)}, {a} offset:{f}\nds_read_b128 {r4(t+4)}, {a} offset:{f+16}")
        for k, (d, t, a, f) in enumerate(items):
            A(f"s_waitcnt lgkmcnt({2*(len(items)-1-k)})\nv_pk_add_f32 {r2(t)}, {r2(t)}, {r2(t+4)}\nv_pk_add_f32 {r2(t+2)}, {r2(t+2)}, {r2(t+6)}")
        for d, t, a, f in items: A(f"v_pk_add_f32 {r2(t)}, {r2(t)}, {r2(t+2)}")
        for d, t, a, f in items: A(f"v_add_f32 v{d}, v{t}, v{t+1}")
    def gather4_store(mask_hi):
        A("s_nop 1")
        for i in (1, 2, 3): A(f"v_mov_b32_dpp v{16+i}, v16 row_shl:{2*i} {FULL}")
        A(f"s_mov_b32 exec_lo, 0x01010101\ns_mov_b32 exec_hi, {mask_hi}\nglobal_store_dwordx4 v31, v[16:19], s[26:27] sc1")
    def mf(d, a, b, first): A(f"v_mfma_f32_16x16x32_bf16 {r4(d)}, {r4(a)}, {r4(b)}, {'0' if first else r4(d)}")
    def poll(name, loads, regs, t, sl=0, **kw):
        A(f"{name}:")
        if sl: A(f"s_sleep {sl}")
        for s in loads: A(s)
        A("s_add_u32 s41, s41, 1\ns_cmp_gt_u32 s41, 0x40000\ns_cbranch_scc1 DONE")
        A("s_waitcnt vmcnt(0)")
        check(regs, t, **kw)
        A(f"s_cbranch_vccnz {name}")
    def ppoll(name, n, loads, regs, t, fin, **kw):
        m = len(loads(0))
        for k in range(n):
            for x in loads(k): A(x)
        A(f"{name}:")
        for k in range(n):
            A(f"s_waitcnt vmcnt({m*(n-1)})")
            check(regs(k), t, **kw)
            A(f"s_cbranch_vccz {name}_G{k}")
            for x in loads(k): A(x)
        A(f"s_add_u32 s41, s41, 1\ns_cmp_gt_u32 s41, 0x40000\ns_cbranch_scc0 {name}\ns_branch DONE")
        for k in range(n):
            A(f"{name}_G{k}:"); fin(k)
            if k < n - 1: A(f"s_branch {name}_G")
        A(f"{name}_G:")
    def mpoll(name, loads, g, t, issued=False):
        raw = [x.replace(f"v{g+i},", f"v{g+8+i},") for i, x in enumerate(loads)]
        if not issued:
            for x in raw: A(x)
        A(f"s_branch {name}_W\n{name}:")
        for i in range(8): A(f"v_and_b32 v{g+i}, s58, v{g+i}")
        for i, x in enumerate(raw): A(f"v_cmp_ne_u32 vcc, 0, v{g+i}\ns_cbranch_vccz {name}_{i}\n{x}\n{name}_{i}:")
        A(f"s_add_u32 s41, s41, 1\ns_cmp_gt_u32 s41, 0x40000\ns_cbranch_scc1 DONE\n{name}_W:\ns_waitcnt vmcnt(0)")
        check(range(g, g + 8), t, src=8)
        A(f"s_cbranch_vccnz {name}")
    def check(regs, t, mask='s58', tag=TAGV, src=0):
        rs = list(regs)
        if len(rs) == 1:
            A(f"v_cmp_ne_u32 vcc, s59, v{rs[0]}"); return
        for r in rs: A(f"v_xor_b32 v{r}, v{tag}, v{r+src}")
        A(f"v_or3_b32 v{t}, v{rs[0]}, v{rs[1]}, v{rs[2]}")
        rest = rs[3:]
        if len(rest) >= 4:
            A(f"v_or3_b32 v{t+1}, v{rest[0]}, v{rest[1]}, v{rest[2]}"); rest = rest[3:] + [t + 1]
        while len(rest) >= 2:
            A(f"v_or3_b32 v{t}, v{t}, v{rest[0]}, v{rest[1]}"); rest = rest[2:]
        assert len(rest) == 1
        A(f"v_bitop3_b32 v{t}, v{t}, v{rest[0]}, {mask} bitop3:0xa8\nv_cmp_ne_u32 vcc, 0, v{t}")
    def clean(x): A(f"v_bfi_b32 v{x}, s58, v{TAGV}, v{x}")
    def publish128(lds, addr, t0):
        for k in range(8): A(f"ds_read_b128 {r4(t0+4*k)}, v12 offset:{lds + 512*k}")
        for k in range(0, 8, 2):
            A(f"s_waitcnt lgkmcnt({6-k})")
            for i in (0, 2): A(f"v_pk_add_f32 {r2(t0+4*k+i)}, {r2(t0+4*k+i)}, {r2(t0+4*k+4+i)}")
        for a, b in ((0, 8), (16, 24), (0, 16)):
            for i in (0, 2): A(f"v_pk_add_f32 {r2(t0+a+i)}, {r2(t0+a+i)}, {r2(t0+b+i)}")
        for i in range(4): clean(t0 + i)
        if o["local"]: A(f"global_store_dwordx4 v5, {r4(t0)}, s[26:27]")
        A(f"global_store_dwordx4 {addr}, {r4(t0)}, s[26:27] sc1")
    def wload(t):
        if not o.get("nowt"): A(f"global_load_dwordx4 {r4(W1+4*t)}, v[6:7], off{ntw}\nv_lshl_add_u64 v[6:7], v[6:7], 0, s[44:45]")
        else: A(f"global_load_dword v{W1+4*t}, v12, s[4:5]")
    avmask = sum(1 << r for r in (1, 2, 3) if o["av"][r - 1])

    hdr = open("cdna_kernels/" + KN[:-7] + ".s.ref").read().split("; Override launch")[0]
    L.append(hdr + "; @launch grid=(256,1,1) block=(512,1,1) lds=67584")
    L.append(f'.amdgcn_target "amdgcn-amd-amdhsa--gfx950"\n.text\n.globl {KN}\n.p2align 8\n.type {KN},@function\n{KN}:')
    XB = ["s_lshl_b32 s33, s31, 1\nv_add_u32 v14, s33, v11\nv_and_b32 v14, 15, v14\nv_lshl_add_u32 v14, v14, 2, v10\nv_lshl_add_u32 v14, v1, 6, v14\nv_lshlrev_b32 v14, 1, v14\ns_lshl_b32 s40, s31, 16",
          "s_lshl_b32 s33, s31, 6\nv_and_b32 v14, 1, v11\nv_lshl_add_u32 v14, v14, 2, v10\nv_lshl_add_u32 v14, v1, 3, v14\nv_add_lshl_u32 v14, v14, s33, 1\ns_lshl_b32 s40, s31, 19"]
    NQ = 2 if o["qx"] else 16
    stamp(0)
    if o.get("dbg"): A("s_memtime s[92:93]")
    A("""
    s_load_dwordx8 s[4:11], s[0:1], 0
    s_load_dwordx16 s[12:27], s[0:1], 32
    s_cmp_ge_u32 s2, 256
    s_cbranch_scc1 EXIT
    s_and_b32 s28, s2, 7
    @XR@
    s_lshr_b32 s29, s2, 3
    s_lshr_b32 s33, s29, 3
    s_lshl2_add_u32 s30, s28, s33
    s_and_b32 s31, s29, 7
    v_lshrrev_b32 v1, 6, v0
    v_and_b32 v0, 63, v0
    v_readfirstlane_b32 s32, v1
    v_lshrrev_b32 v10, 4, v0
    v_and_b32 v11, 15, v0
    v_lshlrev_b32 v12, 4, v0
    v_lshlrev_b32 v13, @QW@, v1
    v_lshl_add_u32 v13, v10, 13, v13
    v_lshl_add_u32 v13, v11, 4, v13
    @XB@
    v_lshlrev_b32 v4, 14, v1
    v_bfe_u32 v2, v0, 2, 2
    v_lshl_add_u32 v2, v2, 8, v4
    v_lshl_add_u32 v2, v10, 6, v2
    v_and_b32 v3, 3, v0
    v_lshl_add_u32 v2, v3, 4, v2
    v_add_u32 v4, v12, v4
    s_mul_i32 s56, s32, @RA@
    s_mul_i32 s33, s31, @RB@
    s_add_u32 s56, s56, s33
    s_mul_i32 s33, s30, @RC@
    s_add_u32 s56, s56, s33
    s_and_b32 s56, s56, 15
    s_lshl_b32 s56, s56, 10
    s_mov_b32 s57, s56
    s_mov_b32 s50, 0x20000
    s_mov_b32 s51, 0x20000
    s_mov_b32 s54, 0x20000
    s_mov_b32 s55, 0x20000
    s_lshl_b32 s42, s30, 23
    s_lshl_b32 s43, s31, 17
    s_add_u32 s42, s42, s43
    s_add_u32 s42, s42, 0x700000
    s_lshl_b32 s33, s30, 8
    s_mov_b32 s38, 0x400000
    s_mov_b32 s39, 0x20000
    s_sub_u32 s38, s38, s33
    s_mov_b32 s41, 0
    s_waitcnt lgkmcnt(0)
    s_add_u32 s36, s10, s33
    s_addc_u32 s37, s11, 0
    """.replace("@XR@", f"s_xor_b32 s28, s28, {o['xr']}" if o.get("xr") else "").replace("@QW@", "16" if o["qx"] else "19").replace("@XB@", XB[o["qx"]]).replace("@RA@", str(o["rot"][0])).replace("@RB@", str(o["rot"][1])).replace("@RC@", str(o["rot"][2])))
    issue("xa", "global_load_dwordx4 v[16:19], v12, s[4:5]")
    A(f"s_load_dword s59, s[26:27], {EPOCH}")
    issue("xb", "global_load_short_d16_hi v15, v14, s[4:5]")
    A("s_add_u32 s48, s6, s42\ns_addc_u32 s49, s7, 0\ns_add_u32 s52, s8, s42\ns_addc_u32 s53, s9, 0")
    def ldq(j):
        issue(f"q{j}", f"buffer_load_dwordx4 {r4(WQ+4*j)}, v13, s[36:39], s40 offen{ntq}")
        if j < NQ - 1: A("s_add_u32 s40, s40, 0x8000" + ("" if o["qx"] else "\ns_and_b32 s40, s40, 0x7ffff"))
    def ldk(j): issue(f"k{j}", f"buffer_load_dwordx4 {r4(KR+4*j)}, v2, s[48:51], s56 offen{nt}\ns_add_u32 s56, s56, 0x400\ns_and_b32 s56, s56, 0x3fff")
    def ldv(j):
        issue(f"v{j}", f"buffer_load_dwordx4 {r4(VR+4*j)}, v4, s[52:55], s57 offen{nt}\ns_add_u32 s57, s57, 0x400\ns_and_b32 s57, s57, 0x3fff")
    pend = ["q0", "q1"]
    qs = [f"q{j}" for j in range(2, NQ)]; acc = 0
    num, den = o.get("qmix", (1, 1))
    for e in [f"k{j}" for j in range(16)] + [f"v{j}" for j in range(16)]:
        pend.append(e); acc += num
        while acc >= den and qs: pend.append(qs.pop(0)); acc -= den
    GQ = "global_load_dwordx4 v[16:19], v14, s[26:27] sc1"
    if o["qx"]: pend.insert(2 + o["qg"], "g0")
    def wearly(t):
        A(f"s_cmp_lg_u32 s34, 1\ns_cbranch_scc1 WE{t}"); wload(t); A(f"WE{t}:")
    def pref(t):
        issue(f"p{t}", f"global_load_dword v221, v{(218, 219, 219, 220)[t]}, s[{(12, 16, 18, 20)[t]}:{(13, 17, 19, 21)[t]}] {o['pfm']}")
    def nxt(n=1):
        for _ in range(n):
            if pend:
                e = pend.pop(0); {"q": ldq, "k": ldk, "v": ldv, "g": lambda j: issue("g0", GQ), "w": wearly, "p": pref}[e[0]](int(e[1:]))
    def upto(tag, ahead):
        while tag in pend: nxt()
        while pend and len(vm) - 1 - vm.index(tag) < ahead: nxt()
    for t, pos in enumerate(o["wb"]): pend.insert(pos + t, f"w{t}")
    late_pf = []
    if o["pf"]:
        for t in (3, 2, 1, 0):
            pos = o["pf"][t]
            if pos < 0: continue
            if pos >= 99: late_pf.insert(0, t)
            else: pend.insert(pos, f"p{t}")
    dsave = o["depth"]; o["depth"] = 99
    nxt(o["first"])
    o["depth"] = dsave
    stamp(1)
    A(f"""
    s_mov_b32 s34, 0
    s_and_b32 s35, s29, 15
    s_cmp_lt_u32 s29, 16
    s_cselect_b32 s34, 1, s34
    s_mul_i32 s33, s28, 11
    s_add_u32 s33, s33, s35
    s_sub_u32 s42, s29, 16
    s_cmp_lt_u32 s42, 11
    s_cselect_b32 s33, s33, 99
    s_cmp_lt_u32 s33, 86
    s_cselect_b32 s34, 2, s34
    s_cselect_b32 s35, s33, s35
    s_and_b32 s33, s29, 3
    s_lshl2_add_u32 s33, s28, s33
    s_cmp_ge_u32 s29, 28
    s_cselect_b32 s34, 3, s34
    s_cselect_b32 s35, s33, s35
    s_mov_b32 s45, 0
    s_getreg_b32 s47, hwreg(HW_REG_XCC_ID, 0, 4)
    s_lshl_b32 s47, s47, 8
    v_and_b32 v20, 1, v0
    v_lshlrev_b32 v20, 4, v20
    v_mov_b32 v21, 0xffff
    v_lshlrev_b32 v20, v20, v21
    v_bfe_u32 v21, v0, 1, 2
    """)
    for r in range(4):
        A(f"v_cmp_eq_u32 vcc, {r}, v21\ns_nop 1\nv_cndmask_b32 v{MASK+r}, 0, v20, vcc")
    A(f"""
    s_lshl3_add_u32 s33, s30, s31
    s_mul_i32 s46, s33, {REC}
    v_add_u32 v24, s46, v12
    s_lshl_b32 s33, s33, 10
    s_add_u32 s33, s33, {REG_Q}
    v_add_u32 v5, s33, v12
    s_lshl3_add_u32 s33, s30, s32
    s_lshl_b32 s33, s33, 10
    s_add_u32 s33, s33, {REG_Q}
    v_add_u32 v14, s33, v12
    v_lshlrev_b32 v25, 2, v0
    v_lshlrev_b32 v26, 9, v1
    v_lshl_add_u32 v26, v11, 5, v26
    v_lshl_add_u32 v26, v10, 4, v26
    v_lshlrev_b32 v27, 2, v1
    v_lshl_add_u32 v27, v11, 5, v27
    v_add_u32 v27, {L_P}, v27
    v_mov_b32 v28, v12
    s_mul_i32 s33, s32, 384
    s_add_u32 s33, s33, {L_A}
    v_lshl_add_u32 v8, v0, 1, s33
    v_lshl_add_u32 v9, v10, 4, s33
    v_lshrrev_b32 v20, 2, v0
    v_and_b32 v21, 3, v0
    v_and_b32 v22, 3, v20
    v_lshl_add_u32 v22, v10, 3, v22
    v_lshl_add_u32 v23, v1, 6, v20
    v_and_b32 v29, 7, v0
    s_lshr_b32 s33, s32, 1
    s_lshl2_add_u32 s33, s28, s33
    s_mul_i32 s33, s33, {8*REC}
    v_mul_u32_u24 v30, {REC}, v29
    v_add_u32 v30, s33, v30
    v_mov_b32 v7, 0
    s_cmp_eq_u32 s34, 2
    s_cbranch_scc1 ADDR_C
    s_cmp_eq_u32 s34, 3
    s_cbranch_scc1 ADDR_D
    s_and_b32 s42, s32, 1
    s_lshl_b32 s42, s42, 8
    s_add_u32 s33, s33, s42
    s_add_u32 s33, s33, {4*REC}
    v_add_u32 v29, s33, v25
    s_lshl_b32 s33, s28, 19
    s_lshl_b32 s42, s35, 6
    s_add_u32 s33, s33, s42
    v_lshl_add_u32 v6, v23, 10, s33
    v_lshl_add_u32 v6, v21, 4, v6
    v_lshl_add_u64 v[6:7], v[6:7], 0, s[12:13]
    s_mov_b32 s44, 0x4000
    s_lshl_b32 s33, s35, 6
    s_add_u32 s33, s33, s28
    s_lshl_b32 s33, s33, 7
    s_add_u32 s33, s33, {REG_B + 4096}
    v_and_b32 v28, 31, v0
    v_lshl_add_u32 v31, v28, 2, s33
    v_lshrrev_b32 v20, 5, v0
    v_lshl_add_u32 v31, v20, 10, v31
    v_lshlrev_b32 v28, 5, v28
    v_lshlrev_b32 v22, 6, v22
    s_branch ADDR_W
    ADDR_C:
    v_mul_u32_u24 v6, 2752, v23
    v_and_b32 v29, 1, v0
    v_lshl_add_u32 v6, v29, 4, v6
    s_lshl_b32 s33, s35, 5
    v_add_u32 v6, s33, v6
    v_cmp_gt_u32 vcc, 2, v21
    v_mov_b32 v{ML}, s16
    v_mov_b32 v{ML+1}, s17
    v_mov_b32 v29, s18
    v_mov_b32 v31, s19
    v_cndmask_b32 v{ML}, v29, v{ML}, vcc
    v_cndmask_b32 v{ML+1}, v31, v{ML+1}, vcc
    v_lshl_add_u64 v[6:7], v[6:7], 0, v[{ML}:{ML+1}]
    s_mov_b32 s44, {16*2752}
    v_and_b32 v28, 31, v0
    v_lshrrev_b32 v20, 5, v0
    v_lshl_add_u32 v20, v1, 1, v20
    s_and_b32 s33, s28, {o["cpb"] - 1}
    s_lshl_b32 s33, s33, 10
    s_add_u32 s33, s33, {REG_B}
    v_lshl_add_u32 v29, v20, 13, s33
    v_lshl_add_u32 v29, v28, 2, v29
    v_lshlrev_b32 v28, 5, v28
    s_lshl_b32 s33, s35, 6
    s_add_u32 s33, s33, {REG_C}
    v_lshl_add_u32 v31, v11, 2, s33
    v_lshl_add_u32 v31, v10, 13, v31
    v_lshlrev_b32 v22, 6, v22
    s_branch ADDR_W
    ADDR_D:
    v_lshrrev_b32 v20, 1, v0
    v_lshl_add_u32 v6, v1, 5, v20
    v_and_b32 v29, 1, v0
    v_lshlrev_b32 v6, 10, v6
    v_lshl_add_u32 v6, v29, 4, v6
    s_lshl_b32 s33, s35, 5
    v_add_u32 v6, s33, v6
    v_lshl_add_u64 v[6:7], v[6:7], 0, s[20:21]
    s_mov_b32 s44, 0x40000
    v_and_b32 v20, 15, v20
    v_lshl_add_u32 v31, v20, 1, s33
    s_lshr_b32 s33, s35, 1
    s_lshl_b32 s33, s33, 3
    s_and_b32 s42, s28, {o["cpb"] - 1}
    s_add_u32 s33, s33, s42
    s_and_b32 s42, s35, 1
    s_lshl4_add_u32 s33, s33, s42
    s_lshl_b32 s33, s33, 6
    s_add_u32 s33, s33, {REG_B}
    v_lshl_add_u32 v29, v20, 2, s33
    v_lshlrev_b32 v22, 5, v22
    ADDR_W:
    s_mul_i32 s33, s32, 6144
    s_add_u32 s33, s33, {L_W}
    v_lshl_add_u32 v22, v21, 3, v22
    v_add_u32 v{WS}, s33, v22
    v_add_u32 v{WS+1}, s33, v12
    ADDR_DONE:
    """)
    if o["pf"]:
        h = 1 if o["p2"] else 0
        A("""
        s_lshl3_add_u32 s33, s29, s32
        s_lshl_b32 s42, s28, 8
        s_add_u32 s42, s42, s33
        s_lshl_b32 s42, s42, 11
        v_lshrrev_b32 v20, 2, v0
        v_lshl_add_u32 v218, v20, 7, s42
        s_and_b32 s33, s33, @M@
        v_lshrrev_b32 v20, @3@, v0
        v_lshl_add_u32 v220, v20, @8@, s33
        v_min_u32 v220, 1375, v220
        s_lshl_b32 s42, s28, 7
        v_lshl_add_u32 v220, v220, 10, s42
        v_and_b32 v20, 3, v20
        v_lshlrev_b32 v20, 7, v20
        v_min_u32 v20, 348, v20
        s_mul_i32 s42, s28, 352
        v_add_u32 v20, s42, v20
        v_min_u32 v20, 2748, v20
        v_lshrrev_b32 v219, @5@, v0
        s_lshl_b32 s33, s33, @1@
        v_add_u32 v219, s33, v219
        v_mul_u32_u24 v219, 2752, v219
        v_add_u32 v219, v20, v219
        """.replace("@M@", "127" if h else "255").replace("@3@", str(3 - h)).replace("@8@", str(8 - h)).replace("@5@", str(5 - h)).replace("@1@", str(1 + h)))
    A(f"""
    s_waitcnt lgkmcnt(0)
    s_add_u32 s59, s59, 1
    s_mov_b32 s58, 0xff
    s_and_b32 s33, s59, s58
    v_mov_b32 v{TAGV}, s33
    """)
    if o["warm"] == 1:
        A("s_mov_b64 exec, 0\n@WARMTREE@\nWARM_RET:\ns_mov_b64 exec, -1")
    wait("xb")
    stamp(2)
    for i in range(4):
        A(f"v_lshlrev_b32 v{BQ+2*i}, 16, v{16+i}\nv_and_b32 v{BQ+2*i+1}, 0xffff0000, v{16+i}")
    A("v_and_b32 v15, 0xffff0000, v15")
    layernorm(BQ, 15, BQ + 8)
    A("s_nop 1")
    pad()
    for j in range(NQ + 1):
        if j < NQ:
            for r in range(4):
                A(f"v_and_b32_dpp v{BQ+4*(j&1)+r}, v15, v{MASK+r} row_newbcast:{j} {FULL}")
        else: A("s_nop 1")
        if j > 0:
            upto(f"q{j-1}", o["depth"] - 1); wait(f"q{j-1}")
            c = "0" if j == 1 else r4(ACC)
            A(f"v_mfma_f32_16x16x32_bf16 {r4(ACC)}, {r4(BQ+4*((j-1)&1))}, {r4(WQ+4*(j-1))}, {c}")
    A(f"s_nop 7\ns_mov_b32 exec_hi, 0\nds_write_b128 v26, {r4(ACC)} offset:{L_Q1 if o['qx'] else L_Q}\ns_mov_b32 exec_hi, -1")
    if o["qx"]:
        A("s_waitcnt lgkmcnt(0)\ns_barrier\ns_cmp_lg_u32 s32, 0\ns_cbranch_scc1 NO_QPUB\nv_lshlrev_b32 v20, 3, v0")
        T0 = BT
        for k in range(8): A(f"ds_read_b64 {r2(T0+2*k)}, v20 offset:{L_Q1 + 512*k}")
        A("s_waitcnt lgkmcnt(0)")
        for a, b in ((0, 2), (4, 6), (8, 10), (12, 14), (0, 4), (8, 12), (0, 8)): A(f"v_pk_add_f32 {r2(T0+a)}, {r2(T0+a)}, {r2(T0+b)}")
        A(f"v_mov_b32 v{T0+2}, s59\nv_mov_b32 v{T0+3}, s59\nglobal_store_dwordx4 v5, {r4(T0)}, s[26:27] sc1\nNO_QPUB:")
        if "depth2" in o: o["depth"] = o["depth2"]
        if o["warm"] == 2:
            nxt(o["depth"]); A("s_mov_b64 exec, 0\n@WARMTREE@\nWARM_RET:\ns_mov_b64 exec, -1")
    if o["qx"]:
        upto("g0", o["depth"] - 1); wait("g0")
        check([18], 20)
        A("s_cbranch_vccz Q_OK")
        poll("POLL_Q", ["global_load_dwordx4 v[16:19], v14, s[26:27] sc1"], [18], 20)
        A(f"Q_OK:\nv_lshlrev_b32 v20, 3, v0\nv_lshl_add_u32 v20, v1, 9, v20\nds_write_b64 v20, v[16:17] offset:{L_Q}")
    nxt(o.get("pre_bar", 2))
    A(f"""
    v_bfe_u32 v21, v0, 2, 2
    v_and_b32 v20, 3, v0
    v_lshl_add_u32 v20, v10, 2, v20
    v_lshlrev_b32 v20, 5, v20
    v_lshl_add_u32 v20, v21, 10, v20
    s_waitcnt lgkmcnt(0)
    s_barrier
    """)
    stamp(3)
    pad()
    for k in range(4): A(f"ds_read_b128 {r4(BQ+4*k)}, v20 offset:{L_Q + 512*(k>>1) + 16*(k&1)}")
    A("s_waitcnt lgkmcnt(0)")
    for i in range(0, 8, 2): A(f"v_pk_add_f32 {r2(BQ+i)}, {r2(BQ+i)}, {r2(BQ+8+i)}")
    for r in (4, 8):
        for i in range(8): A(f"v_add_f32_dpp v{BQ+i}, v{BQ+i}, v{BQ+i} row_ror:{r} {FULL}")
    for i in range(4): A(f"v_cvt_pk_bf16_f32 v{16+i}, v{BQ+2*i}, v{BQ+2*i+1}")
    for jj in range(4):
        A(f"v_cmp_eq_u32 vcc, {jj}, v21\ns_nop 1")
        for r in range(4): A(f"v_cndmask_b32 v{BQ+4*jj+r}, 0, v{16+r}, vcc")
    A("s_nop 1")
    nxt(o["mid"][0])
    DS = [16, 248, 252, ACC]
    for t in range(4):
        for jj in range(4):
            upto(f"k{4*t+jj}", 0); wait(f"k{4*t+jj}")
            c = "0" if jj == 0 else r4(DS[t])
            A(f"v_mfma_f32_16x16x32_bf16 {r4(DS[t])}, {r4(KR+16*t+4*jj)}, {r4(BQ+4*jj)}, {c}")
    nxt(o["mid"][1])
    stamp(4)
    A("s_nop 7")
    S = BQ
    for r in range(4):
        for t in range(4):
            if r == 0: A(f"v_mov_b32_dpp v{S+t}, v{DS[t]} quad_perm:[0,0,0,0] {FULL}")
            else: A(f"v_add_f32_dpp v{S+t}, v{DS[t]+r}, v{S+t} quad_perm:[{r},{r},{r},{r}] {FULL}")
    for t in range(4):
        bf16r(S + t); A(f"v_mul_f32 v{S+t}, 0x3db504f3, v{S+t}"); bf16r(S + t)
    pad()
    A(f"v_max3_f32 v16, v{S}, v{S+1}, v{S+2}\nv_max_f32 v16, v16, v{S+3}")
    wave_allreduce("v_max_f32", 16, 18, (8, 4))
    for t in range(4): A(f"v_sub_f32 v{S+t}, v{S+t}, v16\nv_mul_f32 v{S+t}, 0x3fb8aa3b, v{S+t}\nv_exp_f32 v{S+t}, v{S+t}")
    A(f"s_nop 0\nv_add_f32 v17, v{S}, v{S+1}\nv_add_f32 v18, v{S+2}, v{S+3}\nv_add_f32 v17, v17, v18")
    wave_allreduce("v_add_f32", 17, 18, (8, 4))
    nxt(o["mid"][2])
    A(f"""
    v_lshlrev_b32 v20, 3, v1
    v_and_b32 v21, 7, v0
    v_lshlrev_b32 v21, 3, v21
    s_mov_b64 exec, 1
    ds_write_b64 v20, v[16:17] offset:{L_ML}
    s_mov_b64 exec, -1
    s_waitcnt lgkmcnt(0)
    s_barrier
    ds_read_b64 v[18:19], v21 offset:{L_ML}
    s_waitcnt lgkmcnt(0)
    v_max_f32_dpp v20, v18, v18 row_half_mirror {FULL}
    s_nop 1
    v_max_f32_dpp v20, v20, v20 quad_perm:[1,0,3,2] {FULL}
    s_nop 1
    v_max_f32_dpp v20, v20, v20 quad_perm:[2,3,0,1] {FULL}
    v_sub_f32 v16, v16, v20
    v_sub_f32 v18, v18, v20
    v_mul_f32 v16, 0x3fb8aa3b, v16
    v_mul_f32 v18, 0x3fb8aa3b, v18
    v_exp_f32 v16, v16
    v_exp_f32 v18, v18
    s_nop 0
    v_mul_f32 v21, v18, v19
    """)
    for t in range(4): A(f"v_mul_f32 v{S+t}, v{S+t}, v16\nv_cvt_pk_bf16_f32 v{S+t}, v{S+t}, v{S+t}")
    A(f"""
    v_add_f32_dpp v21, v21, v21 row_half_mirror {FULL}
    s_nop 1
    v_add_f32_dpp v21, v21, v21 quad_perm:[1,0,3,2] {FULL}
    s_nop 1
    v_add_f32_dpp v21, v21, v21 quad_perm:[2,3,0,1] {FULL}
    v_bfi_b32 v20, s58, v{TAGV}, v20
    v_bfi_b32 v21, s58, v{TAGV}, v21
    v_or_b32 v22, s47, v{TAGV}
    v_add_u32 v5, {REG_A2}, v24
    v_mov_b32 v23, v{TAGV}
    s_cmp_lg_u32 s32, 1
    s_cbranch_scc1 NO_ML
    s_mov_b64 exec, 1
    global_store_dwordx4 v24, v[20:23], s[26:27] offset:512 sc1
    s_mov_b64 exec, -1
    NO_ML:
    """)
    nxt(o["mid"][3])
    stamp(5)
    pad()
    for j in range(16):
        for r in range(4):
            A(f"v_and_b32_dpp v{KR+4*j+r}, v{S+(j>>2)}, v{MASK+r} row_newbcast:{4*(j&3)} {FULL}")
    A("s_nop 0")
    pad()
    j0 = 0
    while pend:
        nxt()
        while j0 < 16 and f"v{j0}" in vm and vm.index(f"v{j0}") < done[0]:
            mf(ACC, KR + 4 * j0, VR + 4 * j0, j0 == 0); j0 += 1
    o["depth"] = 99
    for t in late_pf: pref(t)
    stamp(11)
    vm.append("mlg"); A(f"global_load_dwordx4 {r4(ML)}, v30, s[26:27] offset:512 sc1")
    def pv(extra, p2=None, w=False):
        for j in range(j0, 17):
            if w and max(o["bw"], j0) == j:
                for t in range(nb, 4): wload(t); extra += 1
            for t in (1, 2, 3):
                if p2 and max(p2[t // 3], j0) == j:
                    A(f"global_load_dword v221, v{(218, 219, 219, 220)[t]}, s[{(12, 16, 18, 20)[t]}:{(13, 17, 19, 21)[t]}]"); extra += 1
            if j < 16: A(f"s_waitcnt vmcnt({len(vm) - 1 - vm.index(f'v{j}') + extra})"); mf(ACC, KR + 4 * j, VR + 4 * j, j == 0)
    nb = len(o["wb"])
    assert avmask in (0, 2) and (avmask or not nb)
    if avmask or o["p2"]:
        A("s_cmp_eq_u32 s34, 1\ns_cbranch_scc1 PV_W"); pv(0, o["p2"]); A("s_branch PV_DONE\nPV_W:")
    pv(0, None, avmask)
    A("PV_DONE:")
    stamp(6)
    A(f"s_nop 6\ns_mov_b32 exec_hi, 0\nds_write_b128 v26, {r4(ACC)} offset:{L_O}\ns_waitcnt lgkmcnt(0)\ns_barrier")
    A("s_cmp_lg_u32 s32, 0\ns_cbranch_scc1 NO_PUB")
    publish128(L_O, "v24", KR)
    A("NO_PUB:\ns_mov_b32 exec_hi, -1")
    stamp(7)
    A("s_cmp_eq_u32 s34, 0\ns_cbranch_scc1 DONE")
    pad()
    if avmask != 15:
        A(f"s_lshr_b32 s33, {avmask}, s34\ns_bitcmp1_b32 s33, 0\ns_cbranch_scc1 W_ISSUED")
        if o["pw"]: A("s_cmp_eq_u32 s34, 1\ns_cbranch_scc1 W_GO\ns_waitcnt vmcnt(0)\nW_GO:")
        for t in range(4): wload(t)
        A("W_ISSUED:")
    G = VR
    A("s_cmp_eq_u32 s34, 3\ns_cbranch_scc1 ROLE_D")
    def stage_w(n):
        for t in range(n): A(f"ds_write_b128 v{WS+1}, {r4(W1+4*t)} offset:{1024*t}")
    pa = [f"global_load_dword v{G+s}, v29, s[26:27] offset:{REC*(s-4)} sc1" for s in range(8)]
    pb = [f"global_load_dword v{G+s}, v29, s[26:27] offset:{128*s} sc1" for s in range(8)]
    def tr_bc():
        A("s_waitcnt lgkmcnt(0)")
        for ct in range(2):
            for ks in range(2):
                for hf in range(2): A(f"ds_read_b64_tr_b16 {r2(BT+8*ct+4*ks+2*hf)}, v{WS} offset:{2048*ks+256*hf+32*ct}")
    a_via_lds = f"ds_write_b16 v8, v16\ns_waitcnt lgkmcnt(0)\nds_read_b128 {r4(BQ)}, v9\nds_read_b128 {r4(BQ+4)}, v9 offset:64"
    A("s_cmp_eq_u32 s34, 2\ns_cbranch_scc1 ROLE_C")
    A("s_cmp_eq_u32 s32, 0\ns_cbranch_scc1 B_W0\ns_waitcnt vmcnt(0)\nB_W0:")
    A(f"s_waitcnt vmcnt({(1 + o['local']) if o['av'][0] else 0})")
    stage_w(4)
    check(range(ML, ML + 4), 20)
    A("s_cbranch_vccz ML_OK")
    poll("POLL_ML", [f"global_load_dwordx4 {r4(ML)}, v30, s[26:27] offset:512 sc1"], range(ML, ML + 4), 20)
    A("ML_OK:")
    if o["local"]:
        A(f"v_cmp_ne_u32 vcc, s47, v{ML+2}\ns_cbranch_vccnz A_FAR\nv_add_u32 v29, {REG_A2}, v29\nA_FAR:")
    for i, x in enumerate(pa): A(x.replace(f"v{G+i},", f"v{G+8+i},") if o["mr"][0] else x)
    tr_bc()
    A(f"""
    v_max_f32_dpp v20, v{ML}, v{ML} row_half_mirror {FULL}
    s_nop 1
    v_max_f32_dpp v20, v20, v20 quad_perm:[1,0,3,2] {FULL}
    s_nop 1
    v_max_f32_dpp v20, v20, v20 quad_perm:[2,3,0,1] {FULL}
    v_sub_f32 v18, v{ML}, v20
    v_mul_f32 v18, 0x3fb8aa3b, v18
    v_exp_f32 v18, v18
    s_nop 0
    v_mul_f32 v21, v18, v{ML+1}
    s_nop 1
    v_add_f32_dpp v21, v21, v21 row_half_mirror {FULL}
    s_nop 1
    v_add_f32_dpp v21, v21, v21 quad_perm:[1,0,3,2] {FULL}
    s_nop 1
    v_add_f32_dpp v21, v21, v21 quad_perm:[2,3,0,1] {FULL}
    v_rcp_f32 v21, v21
    s_nop 0
    v_mul_f32 v18, v18, v21
    s_nop 1
    """)
    for s in range(8): A(f"v_mov_b32_dpp v{KR+8+s}, v18 row_newbcast:{s} {FULL}")
    if o["mr"][0]: mpoll("POLL_A", pa, G, 20, True)
    else:
        A("s_branch POLL_A_W")
        poll("POLL_A", pa + ["POLL_A_W:"], range(G, G + 8), 20, sl=o["sl"][0])
    stamp(8)
    A(f"v_pk_mul_f32 v[16:17], {r2(KR+8)}, {r2(G)}\nv_pk_mul_f32 v[18:19], {r2(KR+10)}, {r2(G+2)}")
    A(f"v_pk_fma_f32 v[16:17], {r2(KR+12)}, {r2(G+4)}, v[16:17]\nv_pk_fma_f32 v[18:19], {r2(KR+14)}, {r2(G+6)}, v[18:19]")
    A("v_pk_add_f32 v[16:17], v[16:17], v[18:19]\nv_add_f32 v16, v16, v17\nv_cvt_pk_bf16_f32 v16, v16, v16")
    A(a_via_lds)
    pad()
    A("s_waitcnt lgkmcnt(1)"); mf(ACC, BQ, BT, True); mf(ACC + 4, BQ, BT + 8, True)
    A("s_waitcnt lgkmcnt(0)"); mf(ACC, BQ + 4, BT + 4, False); mf(ACC + 4, BQ + 4, BT + 12, False)
    A(f"s_mov_b64 exec, 0xffff\ns_nop 6\nds_write2_b32 v27, v{ACC}, v{ACC+4} offset1:128\ns_mov_b64 exec, -1\ns_waitcnt lgkmcnt(0)\ns_barrier")
    A("s_cmp_lg_u32 s32, 0\ns_cbranch_scc1 DONE")
    colsum2(16, KR, L_P)
    clean(16)
    if o["cpb"] == 1: A("s_mov_b32 exec_hi, 0")
    for i in range((o["cpb"] + 1) // 2): A(f"global_store_dword v31, v16, s[26:27] offset:{2048*i-4096} sc1")
    stamp(9)
    A("s_branch DONE")
    def sum_h(k):
        g = G + 8 * k
        for a, b in ((0, 2), (4, 6), (0, 4)): A(f"v_pk_add_f32 {r2(g+a)}, {r2(g+a)}, {r2(g+b)}")
        A(f"v_add_f32 v16, v{g}, v{g+1}")
    def make_h(first=True):
        if first: sum_h(0)
        bf16r(16)
        A("v_add_f32 v16, v15, v16\nv_cvt_pk_bf16_f32 v16, v16, v16")
    A(f"""
    ROLE_C:
    v_lshl_add_u32 v21, v1, 6, v0
    v_lshlrev_b32 v21, 1, v21
    global_load_short_d16_hi v15, v21, s[4:5]
    v_mov_b32 v{ONES}, 0x3f803f80
    v_mov_b32 v{ONES+1}, 0x3f803f80
    v_mov_b32 v{ONES+2}, 0x3f803f80
    v_mov_b32 v{ONES+3}, 0x3f803f80
    v_mov_b32 v13, 0
    v_add_u32 v14, {L_CS - L_P}, v27
    s_and_b32 s43, s59, 0xffff
    s_waitcnt vmcnt(0)
    v_and_b32 v15, 0xffff0000, v15
    """)
    for i in range(1, o["cpc"] // 4): A(f"v_add_u32 v{VR+48+i}, {0x8000*i}, v31")
    stage_w(4); tr_bc()
    pad()
    A("s_waitcnt lgkmcnt(0)")
    for ks in range(2):
        for ct in range(2): mf(ACC + 4 * ct, ONES, BT + 8 * ct + 4 * ks, ks == 0)
    A(f"s_mov_b64 exec, 0xffff\ns_nop 6\nds_write2_b32 v14, v{ACC}, v{ACC+4} offset1:128\ns_mov_b64 exec, -1")
    if o["pre"]:
        A(f"""
        s_cmp_lg_u32 s32, 0
        s_cbranch_scc1 PRE_OK
        s_and_b32 s33, s35, 15
        s_lshl_b32 s33, s33, 3
        s_and_b32 s42, s28, {o["cpb"] - 1}
        s_add_u32 s33, s33, s42
        s_lshl_b32 s33, s33, 10
        s_add_u32 s33, s33, {REG_B}
        v_lshl_add_u32 v21, v0, 7, s33
        s_mov_b64 exec, 0xff
        PRE:
        global_load_dword v22, v21, s[26:27] sc1
        s_add_u32 s41, s41, 1
        s_cmp_gt_u32 s41, 0x40000
        s_cbranch_scc1 DONE
        s_waitcnt vmcnt(0)
        v_and_b32 v22, 0xff, v22
        v_cmp_eq_u32 vcc, v22, v{TAGV}
        s_bcnt1_i32_b64 s33, vcc
        s_cmp_lt_u32 s33, {o["pre"]}
        s_cbranch_scc1 PRE
        s_mov_b64 exec, -1
        PRE_OK:
        """)
    A("s_waitcnt lgkmcnt(0)\ns_barrier")
    colsum2(14, KR, L_CS)
    if o["nc"]:
        ppoll("POLL_B", o["nc"], lambda k: [x.replace(f"v{G+i},", f"v{G+8*k+i},") for i, x in enumerate(pb)], lambda k: range(G + 8 * k, G + 8 * k + 8), 22, sum_h)
    elif o["mr"][1]: mpoll("POLL_B", pb, G, 22)
    else: poll("POLL_B", pb, range(G, G + 8), 22, sl=o["sl"][1])
    stamp(8)
    make_h(not o["nc"])
    A(a_via_lds)
    A("s_waitcnt lgkmcnt(1)"); mf(ACC, BQ, BT, True); mf(ACC + 4, BQ, BT + 8, True); mf(KR, BQ, ONES, True); mf(KR + 4, BQ, BQ, True)
    A("s_waitcnt lgkmcnt(0)"); mf(ACC, BQ + 4, BT + 4, False); mf(ACC + 4, BQ + 4, BT + 12, False); mf(KR, BQ + 4, ONES, False); mf(KR + 4, BQ + 4, BQ + 4, False)
    A(f"s_mov_b64 exec, 0xffff\ns_nop 4\nds_write2_b32 v27, v{ACC}, v{ACC+4} offset1:128\ns_mov_b64 exec, 1\nds_write_b32 v27, v{KR} offset:1024\nds_write_b32 v27, v{KR+4} offset:1056")
    A("s_mov_b64 exec, -1\ns_waitcnt lgkmcnt(0)\ns_barrier")
    stamp(12)
    A("s_cmp_lg_u32 s32, 0\ns_cbranch_scc1 DONE")
    pad()
    colsum2(16, KR, L_P, [(17, KR + 8, "v13", L_P + 1024), (18, KR + 16, "v13", L_P + 1056)])
    A("v_mul_f32 v17, 0x3b000000, v17\nv_mul_f32 v18, 0x3b000000, v18\nv_fma_f32 v18, -v17, v17, v18\nv_max_f32 v18, 0, v18")
    A("v_cvt_pk_bf16_f32 v18, v17, v18\nv_lshlrev_b32 v17, 16, v18\nv_and_b32 v18, 0xffff0000, v18\nv_add_f32 v18, 0x3727c5ac, v18")
    bf16r(18)
    A("v_sqrt_f32 v18, v18\nv_fma_f32 v16, -v17, v14, v16")
    bf16r(18)
    A("v_rcp_f32 v18, v18\ns_nop 0\nv_mul_f32 v16, v16, v18")
    bf16r(16)
    A("v_mov_b32 v17, v16\ns_nop 1\nv_permlane16_swap_b32 v16, v17\nv_max_f32 v16, 0, v16\nv_mul_f32 v16, v16, v17\nv_cvt_pk_bf16_f32 v16, v16, v16")
    A("v_lshl_or_b32 v16, v16, 16, s43")
    if o["cpc"] < 4: A("s_mov_b32 exec_hi, 0")
    if o["cpc"] < 2: A("s_mov_b32 exec_lo, 0xffff")
    A("global_store_dword v31, v16, s[26:27] sc1")
    for i in range(1, o["cpc"] // 4): A(f"global_store_dword v{VR+48+i}, v16, s[26:27] sc1")
    stamp(9)
    A("s_branch DONE")
    A("ROLE_D:")
    wload(4)
    A("s_cmp_ge_u32 s32, 3\ns_cbranch_scc1 D_5"); wload(5); A("D_5:")
    A(f"""
    global_load_short_d16_hi v15, v31, s[4:5]
    v_lshrrev_b32 v13, 3, v0
    v_lshl_add_u32 v13, v13, 3, v1
    v_lshlrev_b32 v13, 7, v13
    v_and_b32 v14, 0x70, v12
    v_add3_u32 v13, v13, v14, s{43}
    s_mul_i32 s33, s32, 384
    s_add_u32 s33, s33, {L_A}
    v_lshl_add_u32 v8, v0, 3, s33
    s_and_b32 s33, s59, 0xffff
    v_mov_b32 v14, s33
    s_mov_b32 s46, 0xffff
    s_mov_b32 s42, 0x07060302
    s_cmp_lt_u32 s32, 3
    s_cselect_b32 s47, 0xffff, 0xff
    s_waitcnt vmcnt(0)
    v_and_b32 v15, 0xffff0000, v15
    """.replace("v_add3_u32 v13, v13, v14, s43", f"s_lshr_b32 s43, s35, {6 - o['cpc'].bit_length()}\ns_lshl_b32 s43, s43, 13\ns_add_u32 s43, s43, {REG_C}\nv_add3_u32 v13, v13, v14, s43").replace("s_cselect_b32 s47, 0xffff, 0xff", "s_cselect_b32 s47, s46, s58"))
    stage_w(6)
    A("s_waitcnt lgkmcnt(0)")
    for i in range(6):
        for hf in range(2): A(f"ds_read_b64_tr_b16 {r2(BT+4*i+2*hf)}, v{WS} offset:{1024*i+128*hf}")
    pad()
    A("s_cmp_lg_u32 s32, 0\ns_cbranch_scc1 D_NOH")
    if o["mr"][1]: mpoll("POLL_B2", pb, G, 22)
    else: poll("POLL_B2", pb, range(G, G + 8), 22, sl=o["sl"][1])
    make_h()
    A("v_and_b32 v15, 0xffff0000, v16\nD_NOH:")
    if o["gate"]: A("s_barrier")
    if o["gate"] > 1: A(f"s_sleep {o['gate']}")
    stamp(8)
    A("s_mov_b32 exec_hi, s47")
    permc = lambda k: A(f"v_perm_b32 v16, v{G+4*k+1}, v{G+4*k}, s42\nv_perm_b32 v17, v{G+4*k+3}, v{G+4*k+2}, s42")
    ldc = lambda k: [f"global_load_dwordx4 {r4(G+4*k)}, v13, s[26:27] sc1"]
    if o["nd"]: ppoll("POLL_C", o["nd"], ldc, lambda k: range(G + 4 * k, G + 4 * k + 4), 22, permc, mask="s46", tag=14)
    else: poll("POLL_C", ldc(0), range(G, G + 4), 22, mask="s46", tag=14, sl=o["sl"][2]); permc(0)
    stamp(9)
    A(f"ds_write_b64 v8, v[16:17]\ns_mov_b32 exec_hi, -1\ns_waitcnt lgkmcnt(0)")
    for i in range(6): A(f"ds_read_b128 {r4(KR+4*i)}, v9 offset:{64*i}")
    for i in range(5):
        A(f"s_waitcnt lgkmcnt({5-i})"); mf(ACC, KR + 4 * i, BT + 4 * i, i == 0)
    A("s_cmp_ge_u32 s32, 3\ns_cbranch_scc1 D_6\ns_waitcnt lgkmcnt(0)"); mf(ACC, KR + 20, BT + 20, False); A("D_6:")
    A(f"s_mov_b64 exec, 0xffff\ns_nop 6\nds_write_b32 v27, v{ACC}\ns_mov_b64 exec, -1\ns_waitcnt lgkmcnt(0)\ns_barrier")
    A("s_cmp_lg_u32 s32, 0\ns_cbranch_scc1 DONE")
    colsum(16, KR, L_P)
    bf16r(16)
    A("v_add_f32 v16, v16, v15\nv_cvt_pk_bf16_f32 v16, v16, v16\ns_mov_b64 exec, 0x55555555")
    A("global_store_short v31, v16, s[22:23]")
    A(f"s_cmp_lg_u32 s35, 0\ns_cbranch_scc1 DONE\ns_mov_b64 exec, 1\nv_mov_b32 v20, {EPOCH}\nv_mov_b32 v21, s59\nglobal_store_dword v20, v21, s[26:27]")
    A("DONE:")
    if o["nd"] or o["nc"] or o["pf"]: A("s_waitcnt vmcnt(0)")
    if o["stamps"]:
        A("s_waitcnt vmcnt(0)")
        stamp(10)
        A(f"s_mov_b32 s88, s41\ns_mov_b32 s90, s34\ns_mov_b64 exec, 1\ns_lshl3_add_u32 s33, s2, s32\ns_lshl_b32 s33, s33, 6\ns_add_u32 s33, s33, {DIAG}\nv_mov_b32 v20, s33\ns_waitcnt lgkmcnt(0)")
        for i in range(16): A(f"v_mov_b32 v21, s{60+2*i}\nglobal_store_dword v20, v21, s[26:27] offset:{4*i}")
    if o.get("dbg"):
        A("s_cmp_lg_u32 s2, 224\ns_cbranch_scc1 EXIT\ns_cmp_lg_u32 s32, 0\ns_cbranch_scc1 EXIT\ns_memtime s[94:95]\ns_waitcnt lgkmcnt(0)\nv_mov_b32 v20, 0")
        for i in range(1, 11): A(f"s_sub_u32 s33, s{60+2*i}, s60\nv_mov_b32 v21, s33\nglobal_store_dword v20, v21, s[24:25] offset:{4*i}")
        A("s_sub_u32 s33, s94, s92\nv_mov_b32 v21, s33\nglobal_store_dword v20, v21, s[24:25]")
    if o.get("amp"):
        A(f"s_sub_u32 s33, s{60+2*o['amp']}, s60\ns_min_u32 s33, s33, 5000\ns_mul_i32 s33, s33, 20\nAMP:\ns_memrealtime s[94:95]\ns_waitcnt lgkmcnt(0)\ns_sub_u32 s42, s94, s80\ns_cmp_lt_u32 s42, s33\ns_cbranch_scc1 AMP")
    A("EXIT:\ns_endpgm")
    L.append(f""".section .rodata,"a"
.p2align 6
.amdhsa_kernel {KN}
  .amdhsa_next_free_vgpr 256
  .amdhsa_next_free_sgpr 96
  .amdhsa_accum_offset 256
  .amdhsa_group_segment_fixed_size 0
  .amdhsa_kernarg_size 96
  .amdhsa_user_sgpr_count 2
  .amdhsa_user_sgpr_kernarg_segment_ptr 1
  .amdhsa_system_sgpr_workgroup_id_x 1
.end_amdhsa_kernel""")
    txt = "\n".join(L) + "\n"
    txt = txt.replace("@ATOM@", "s_nop 0" if o.get("noatom") else "global_atomic_add v21, v20, s[24:25] sc1")
    if o.get("noatom"): txt = txt.replace("v_cmp_gt_u32 vcc, 32, v23", "v_cmp_gt_u32 vcc, 0, v23")
    if o["warm"]:
        n = npad[0]
        sel = o.get("warm_sel") or [round(i * (n - 1) / 7) for i in range(8)]
        tree = "\n".join(f"    s_cmp_eq_u32 s32, {w}\n    s_cbranch_scc1 PAD{p}" for w, p in enumerate(sel))
        txt = txt.replace("    @WARMTREE@", tree)
    return txt

if __name__ == "__main__":
    out = sys.argv[1]
    kw = {}
    for a in sys.argv[2:]:
        k, v = a.split("=")
        try: v = json.loads(v)
        except Exception: pass
        kw[k] = v
    open(out, "w").write(gen(**kw))
```

```python
import sys, json
KN = "sequential_preLN__sliding_block_cached__glu_gated_reglu__decode_kernel"
DEF = dict(stamps=0, nt=1, ntw=1, av=(1, 0, 0), local=1, first=4, sl=(0, 0, 0), gate=0, wb=(), pf=None, fl=0, sb=0, sc=0, tw=0, ce=0, bal=0, bw=0, od=1, p2=None, pw=0, odd=0, mr=(0, 0), cpb=1, cpc=1, nd=0, nc=0, pre=0, pfm="", qx=1, qg=14, mid=(1, 1, 1, 1), warm=1, ntq=1, sleep=0, depth=6, rot=(1, 3, 5))

REG_A, REC = 0, 640
REG_B, REG_C, DIAG = 0x140000, 0x180000, 0x80000
REG_Q, EPOCH = 0xc0000, 0x7ff00
REG_A2, REG_Q2 = 0x100000, 0x1c0000
L_Q, L_ML, L_O, L_Q1, L_A, L_P, L_CS, L_W = 0, 4096, 4352, 8448, 12544, 15616, 16768, 18432
TAGV = 3
KR, VR, WQ = 32, 96, 160
W1, BT, ML, ONES, WS = 160, 184, 208, 212, 216
BQ = 224
MASK = 240
ACC = 244
FULL = "row_mask:0xf bank_mask:0xf"

def gen(**kw):
    o = dict(DEF); o.update(kw)
    L = []
    def A(s):
        for x in s.split("\n"):
            x = x.strip()
            if x: L.append(x if x.endswith(":") else "    " + x)
    nt = " nt" if o["nt"] else ""
    ntw = " nt" if o["ntw"] else ""
    ntq = " nt" if o["ntq"] else ""
    vm = []
    done = [0]
    def issue(tag, s):
        d = o["depth"]
        if len(vm) - done[0] >= d:
            A(f"s_waitcnt vmcnt({d-1})"); done[0] = len(vm) - (d - 1)
        if o["odd"] and d < 99 and len(vm) - done[0] >= d - o["od"] and len(vm) % o["odd"] == 0:
            A(f"s_bitcmp1_b32 s28, 0\ns_cbranch_scc1 OD{len(vm)}\ns_waitcnt vmcnt({d-1-o['od']})\nOD{len(vm)}:")
        vm.append(tag); A(s)
    def wait(tag, note=True):
        i = max(i for i, t in enumerate(vm) if t == tag)
        if i < done[0]: return
        A(f"s_waitcnt vmcnt({len(vm) - 1 - i})")
        if note: done[0] = i + 1
    def stamp(i):
        if o["stamps"]: A(f"s_memrealtime s[{60+2*i}:{61+2*i}]")
    npad = [0]
    def pad():
        if o["warm"]:
            A(f"PAD{npad[0]}:\ns_cbranch_execz WARM_RET"); npad[0] += 1
    def r4(b): return f"v[{b}:{b+3}]"
    def r2(b): return f"v[{b}:{b+1}]"
    def rows_allreduce(op, x, t):
        A(f"v_mov_b32 v{t}, v{x}\ns_nop 1\nv_permlane16_swap_b32 v{t}, v{x}\n{op} v{x}, v{x}, v{t}")
        A(f"v_mov_b32 v{t}, v{x}\ns_nop 1\nv_permlane32_swap_b32 v{t}, v{x}\n{op} v{x}, v{x}, v{t}")
    def wave_allreduce(op, x, t, rors=(8, 4, 2, 1)):
        for r in rors:
            A(f"s_nop 1\n{op}_dpp v{x}, v{x}, v{x} row_ror:{r} {FULL}")
        rows_allreduce(op, x, t)
    def bf16r(x):
        A(f"v_cvt_pk_bf16_f32 v{x}, v{x}, v{x}\nv_and_b32 v{x}, 0xffff0000, v{x}")
    def layernorm(xs, own, t0):
        s, t, m = t0, t0 + 1, t0 + 2
        A(f"v_add_f32 v{s}, v{xs}, v{xs+1}\nv_add_f32 v{t}, v{xs+2}, v{xs+3}\nv_add_f32 v{m}, v{xs+4}, v{xs+5}")
        A(f"v_add_f32 v{s}, v{s}, v{t}\nv_add_f32 v{t}, v{xs+6}, v{xs+7}\nv_add_f32 v{m}, v{m}, v{t}\nv_add_f32 v{m}, v{m}, v{s}")
        wave_allreduce("v_add_f32", m, t)
        A(f"v_mul_f32 v{m}, 0x3b000000, v{m}")
        for i in range(8): A(f"v_sub_f32 v{xs+i}, v{xs+i}, v{m}")
        A(f"v_mul_f32 v{s}, v{xs}, v{xs}\nv_mul_f32 v{t}, v{xs+1}, v{xs+1}")
        for i in range(2, 8): A(f"v_fmac_f32 v{(s, t)[i & 1]}, v{xs+i}, v{xs+i}")
        A(f"v_add_f32 v{s}, v{s}, v{t}")
        bf16r(m)
        A(f"v_sub_f32 v{own}, v{own}, v{m}")
        bf16r(own)
        wave_allreduce("v_add_f32", s, t)
        A(f"v_mul_f32 v{s}, 0x3b000000, v{s}")
        bf16r(s)
        A(f"v_add_f32 v{s}, 0x3727c5ac, v{s}")
        bf16r(s)
        A(f"v_sqrt_f32 v{s}, v{s}\ns_nop 0")
        bf16r(s)
        A(f"v_rcp_f32 v{s}, v{s}\ns_nop 0\nv_mul_f32 v{own}, v{own}, v{s}\nv_cvt_pk_bf16_f32 v{own}, v{own}, v{own}")
    def colsum(dst, t0, off, extra=()):
        items = [(dst, t0, "v28", off)] + list(extra)
        for d, t, a, f in items: A(f"ds_read_b128 {r4(t)}, {a} offset:{f}")
        for k, (d, t, a, f) in enumerate(items):
            A(f"s_waitcnt lgkmcnt({len(items)-1-k})\nv_pk_add_f32 {r2(t)}, {r2(t)}, {r2(t+2)}")
        for d, t, a, f in items: A(f"v_add_f32 v{t}, v{t}, v{t+1}")
        if len(items) < 3: A("s_nop 1")
        for d, t, a, f in items: A(f"v_add_f32_dpp v{d}, v{t}, v{t} quad_perm:[1,0,3,2] {FULL}")
    def colsum2(dst, t0, off, extra=()):
        items = [(dst, t0, "v28", off)] + list(extra)
        for d, t, a, f in items: A(f"ds_read_b128 {r4(t)}, {a} offset:{f}\nds_read_b128 {r4(t+4)}, {a} offset:{f+16}")
        for k, (d, t, a, f) in enumerate(items):
            A(f"s_waitcnt lgkmcnt({2*(len(items)-1-k)})\nv_pk_add_f32 {r2(t)}, {r2(t)}, {r2(t+4)}\nv_pk_add_f32 {r2(t+2)}, {r2(t+2)}, {r2(t+6)}")
        for d, t, a, f in items: A(f"v_pk_add_f32 {r2(t)}, {r2(t)}, {r2(t+2)}")
        for d, t, a, f in items: A(f"v_add_f32 v{d}, v{t}, v{t+1}")
    def gather4_store(mask_hi):
        A("s_nop 1")
        for i in (1, 2, 3): A(f"v_mov_b32_dpp v{16+i}, v16 row_shl:{2*i} {FULL}")
        A(f"s_mov_b32 exec_lo, 0x01010101\ns_mov_b32 exec_hi, {mask_hi}\nglobal_store_dwordx4 v31, v[16:19], s[26:27] sc1")
    def mf(d, a, b, first): A(f"v_mfma_f32_16x16x32_bf16 {r4(d)}, {r4(a)}, {r4(b)}, {'0' if first else r4(d)}")
    def poll(name, loads, regs, t, sl=0, **kw):
        A(f"{name}:")
        if sl: A(f"s_sleep {sl}")
        for s in loads: A(s)
        A("s_add_u32 s41, s41, 1\ns_cmp_gt_u32 s41, 0x40000\ns_cbranch_scc1 DONE")
        A("s_waitcnt vmcnt(0)")
        check(regs, t, **kw)
        A(f"s_cbranch_vccnz {name}")
    def ppoll(name, n, loads, regs, t, fin, skip=0, sl=0, **kw):
        m = len(loads(0))
        for k in range(skip, n):
            if k and sl: A(f"s_sleep {sl}")
            for x in loads(k): A(x)
        A(f"{name}:")
        for k in range(n):
            A(f"s_waitcnt vmcnt({m*(n-1)})")
            check(regs(k), t, **kw)
            A(f"s_cbranch_vccz {name}_G{k}")
            for x in loads(k): A(x)
        A(f"s_add_u32 s41, s41, 1\ns_cmp_gt_u32 s41, 0x40000\ns_cbranch_scc0 {name}\ns_branch DONE")
        for k in range(n):
            A(f"{name}_G{k}:"); fin(k)
            if k < n - 1: A(f"s_branch {name}_G")
        A(f"{name}_G:")
    def mpoll(name, loads, g, t, issued=False):
        raw = [x.replace(f"v{g+i},", f"v{g+8+i},") for i, x in enumerate(loads)]
        if not issued:
            for x in raw: A(x)
        A(f"s_branch {name}_W\n{name}:")
        for i in range(8): A(f"v_and_b32 v{g+i}, s58, v{g+i}")
        for i, x in enumerate(raw): A(f"v_cmp_ne_u32 vcc, 0, v{g+i}\ns_cbranch_vccz {name}_{i}\n{x}\n{name}_{i}:")
        A(f"s_add_u32 s41, s41, 1\ns_cmp_gt_u32 s41, 0x40000\ns_cbranch_scc1 DONE\n{name}_W:\ns_waitcnt vmcnt(0)")
        check(range(g, g + 8), t, src=8)
        A(f"s_cbranch_vccnz {name}")
    def check(regs, t, mask='s58', tag=TAGV, src=0):
        rs = list(regs)
        if len(rs) == 1:
            A(f"v_cmp_ne_u32 vcc, s59, v{rs[0]}"); return
        for r in rs: A(f"v_xor_b32 v{r}, v{tag}, v{r+src}")
        A(f"v_or3_b32 v{t}, v{rs[0]}, v{rs[1]}, v{rs[2]}")
        rest = rs[3:]
        if len(rest) >= 4:
            A(f"v_or3_b32 v{t+1}, v{rest[0]}, v{rest[1]}, v{rest[2]}"); rest = rest[3:] + [t + 1]
        while len(rest) >= 2:
            A(f"v_or3_b32 v{t}, v{t}, v{rest[0]}, v{rest[1]}"); rest = rest[2:]
        assert len(rest) == 1
        A(f"v_bitop3_b32 v{t}, v{t}, v{rest[0]}, {mask} bitop3:0xa8\nv_cmp_ne_u32 vcc, 0, v{t}")
    def clean(x): A(f"v_bfi_b32 v{x}, s58, v{TAGV}, v{x}")
    def publish128(lds, addr, t0):
        for k in range(8): A(f"ds_read_b128 {r4(t0+4*k)}, v12 offset:{lds + 512*k}")
        for k in range(0, 8, 2):
            A(f"s_waitcnt lgkmcnt({6-k})")
            for i in (0, 2): A(f"v_pk_add_f32 {r2(t0+4*k+i)}, {r2(t0+4*k+i)}, {r2(t0+4*k+4+i)}")
        for a, b in ((0, 8), (16, 24), (0, 16)):
            for i in (0, 2): A(f"v_pk_add_f32 {r2(t0+a+i)}, {r2(t0+a+i)}, {r2(t0+b+i)}")
        for i in range(4): clean(t0 + i)
        if o["local"]: A(f"global_store_dwordx4 v5, {r4(t0)}, s[26:27]")
        A(f"global_store_dwordx4 {addr}, {r4(t0)}, s[26:27] sc1")
    def wload(t):
        if not o.get("nowt"): A(f"global_load_dwordx4 {r4(W1+4*t)}, v[6:7], off{ntw}\nv_lshl_add_u64 v[6:7], v[6:7], 0, s[44:45]")
        else: A(f"global_load_dword v{W1+4*t}, v12, s[4:5]")
    avmask = sum(1 << r for r in (1, 2, 3) if o["av"][r - 1])

    hdr = open("cdna_kernels/" + KN[:-7] + ".s.ref").read().split("; Override launch")[0]
    L.append(hdr + "; @launch grid=(256,1,1) block=(512,1,1) lds=67584")
    L.append(f'.amdgcn_target "amdgcn-amd-amdhsa--gfx950"\n.text\n.globl {KN}\n.p2align 8\n.type {KN},@function\n{KN}:')
    XB = ["s_lshl_b32 s33, s31, 1\nv_add_u32 v14, s33, v11\nv_and_b32 v14, 15, v14\nv_lshl_add_u32 v14, v14, 2, v10\nv_lshl_add_u32 v14, v1, 6, v14\nv_lshlrev_b32 v14, 1, v14\ns_lshl_b32 s40, s31, 16",
          "s_lshl_b32 s33, s31, 6\nv_and_b32 v14, 1, v11\nv_lshl_add_u32 v14, v14, 2, v10\nv_lshl_add_u32 v14, v1, 3, v14\nv_add_lshl_u32 v14, v14, s33, 1\ns_lshl_b32 s40, s31, 19"]
    NQ = 2 if o["qx"] else 16
    stamp(0)
    if o.get("dbg"): A("s_memtime s[92:93]")
    A("""
    s_load_dwordx8 s[4:11], s[0:1], 0
    s_load_dwordx16 s[12:27], s[0:1], 32
    s_cmp_ge_u32 s2, 256
    s_cbranch_scc1 EXIT
    s_and_b32 s28, s2, 7
    @XR@
    s_lshr_b32 s29, s2, 3
    s_lshr_b32 s33, s29, 3
    s_lshl2_add_u32 s30, s28, s33
    s_and_b32 s31, s29, 7
    v_lshrrev_b32 v1, 6, v0
    v_and_b32 v0, 63, v0
    v_readfirstlane_b32 s32, v1
    v_lshrrev_b32 v10, 4, v0
    v_and_b32 v11, 15, v0
    v_lshlrev_b32 v12, 4, v0
    v_lshlrev_b32 v13, @QW@, v1
    v_lshl_add_u32 v13, v10, 13, v13
    v_lshl_add_u32 v13, v11, 4, v13
    @XB@
    v_lshlrev_b32 v4, 14, v1
    v_bfe_u32 v2, v0, 2, 2
    v_lshl_add_u32 v2, v2, 8, v4
    v_lshl_add_u32 v2, v10, 6, v2
    v_and_b32 v3, 3, v0
    v_lshl_add_u32 v2, v3, 4, v2
    v_add_u32 v4, v12, v4
    s_mul_i32 s56, s32, @RA@
    s_mul_i32 s33, s31, @RB@
    s_add_u32 s56, s56, s33
    s_mul_i32 s33, s30, @RC@
    s_add_u32 s56, s56, s33
    s_and_b32 s56, s56, 15
    s_lshl_b32 s56, s56, 10
    s_mov_b32 s57, s56
    s_mov_b32 s50, 0x20000
    s_mov_b32 s51, 0x20000
    s_mov_b32 s54, 0x20000
    s_mov_b32 s55, 0x20000
    s_lshl_b32 s42, s30, 23
    s_lshl_b32 s43, s31, 17
    s_add_u32 s42, s42, s43
    s_add_u32 s42, s42, 0x700000
    s_lshl_b32 s33, s30, 8
    s_mov_b32 s38, 0x400000
    s_mov_b32 s39, 0x20000
    s_sub_u32 s38, s38, s33
    s_mov_b32 s41, 0
    s_waitcnt lgkmcnt(0)
    s_add_u32 s36, s10, s33
    s_addc_u32 s37, s11, 0
    """.replace("@XR@", f"s_xor_b32 s28, s28, {o['xr']}" if o.get("xr") else "").replace("@QW@", "16" if o["qx"] else "19").replace("@XB@", XB[o["qx"]]).replace("@RA@", str(o["rot"][0])).replace("@RB@", str(o["rot"][1])).replace("@RC@", str(o["rot"][2])))
    issue("xa", "global_load_dwordx4 v[16:19], v12, s[4:5]")
    A(f"s_load_dword s59, s[26:27], {EPOCH}")
    issue("xb", "global_load_short_d16_hi v15, v14, s[4:5]")
    A("s_add_u32 s48, s6, s42\ns_addc_u32 s49, s7, 0\ns_add_u32 s52, s8, s42\ns_addc_u32 s53, s9, 0")
    def ldq(j):
        issue(f"q{j}", f"buffer_load_dwordx4 {r4(WQ+4*j)}, v13, s[36:39], s40 offen{ntq}")
        if j < NQ - 1: A("s_add_u32 s40, s40, 0x8000" + ("" if o["qx"] else "\ns_and_b32 s40, s40, 0x7ffff"))
    def ldk(j): issue(f"k{j}", f"buffer_load_dwordx4 {r4(KR+4*j)}, v2, s[48:51], s56 offen{nt}\ns_add_u32 s56, s56, 0x400\ns_and_b32 s56, s56, 0x3fff")
    def ldv(j):
        issue(f"v{j}", f"buffer_load_dwordx4 {r4(VR+4*j)}, v4, s[52:55], s57 offen{nt}\ns_add_u32 s57, s57, 0x400\ns_and_b32 s57, s57, 0x3fff")
    pend = ["q0", "q1"]
    PAR = "s_bitcmp1_b32 s28, 0\n"
    if o["bal"]:
        pend = ["q0"]
        A(PAR + f"s_cbranch_scc1 BAL0\ns_add_u32 s33, s40, 0x8000\nbuffer_load_dwordx4 {r4(WQ+4)}, v13, s[36:39], s33 offen{ntq}\nbuffer_load_dwordx4 {r4(WQ+8)}, v13, s[36:39], s33 offen offset:1024{ntq}\nBAL0:")
    qs = [f"q{j}" for j in range(2, NQ)]; acc = 0
    num, den = o.get("qmix", (1, 1))
    for e in [f"k{j}" for j in range(16)] + [f"v{j}" for j in range(16)]:
        pend.append(e); acc += num
        while acc >= den and qs: pend.append(qs.pop(0)); acc -= den
    GQ = "global_load_dwordx4 v[16:19], v14, s[26:27] sc1"
    if o["qx"]: pend.insert(2 - o["bal"] + o["qg"], "g0")
    GQ2 = f"global_load_dwordx4 {r4(WQ)}, v{WQ+12}, s[26:27] sc1"
    def wearly(t):
        A(f"s_cmp_lg_u32 s34, 1\ns_cbranch_scc1 WE{t}"); wload(t); A(f"WE{t}:")
    def pref(t):
        issue(f"p{t}", f"global_load_dword v221, v{(218, 219, 219, 220)[t]}, s[{(12, 16, 18, 20)[t]}:{(13, 17, 19, 21)[t]}] {o['pfm']}")
    def nxt(n=1):
        for _ in range(n):
            if pend:
                e = pend.pop(0); {"q": ldq, "k": ldk, "v": ldv, "g": lambda j: issue("g0", (PAR + f"s_cbranch_scc0 BAL4\n{GQ2}\nBAL4:\n" if o["bal"] else "") + GQ), "w": wearly, "p": pref}[e[0]](int(e[1:]))
    def upto(tag, ahead):
        while tag in pend: nxt()
        while pend and len(vm) - 1 - vm.index(tag) < ahead: nxt()
    for t, pos in enumerate(o["wb"]): pend.insert(pos + t, f"w{t}")
    late_pf = []
    if o["pf"]:
        for t in (3, 2, 1, 0):
            pos = o["pf"][t]
            if pos < 0: continue
            if pos >= 99: late_pf.insert(0, t)
            else: pend.insert(pos, f"p{t}")
    dsave = o["depth"]; o["depth"] = 99
    nxt(o["first"])
    o["depth"] = dsave
    stamp(1)
    A(f"""
    s_mov_b32 s34, 0
    s_and_b32 s35, s29, 15
    s_cmp_lt_u32 s29, 16
    s_cselect_b32 s34, 1, s34
    s_mul_i32 s33, s28, 11
    s_add_u32 s33, s33, s35
    s_sub_u32 s42, s29, 16
    s_cmp_lt_u32 s42, 11
    s_cselect_b32 s33, s33, 99
    s_cmp_lt_u32 s33, 86
    s_cselect_b32 s34, 2, s34
    s_cselect_b32 s35, s33, s35
    s_and_b32 s33, s29, 3
    s_lshl2_add_u32 s33, s28, s33
    s_cmp_ge_u32 s29, 28
    s_cselect_b32 s34, 3, s34
    s_cselect_b32 s35, s33, s35
    s_mov_b32 s45, 0
    s_getreg_b32 s47, hwreg(HW_REG_XCC_ID, 0, 4)
    s_lshl_b32 s47, s47, 8
    v_and_b32 v20, 1, v0
    v_lshlrev_b32 v20, 4, v20
    v_mov_b32 v21, 0xffff
    v_lshlrev_b32 v20, v20, v21
    v_bfe_u32 v21, v0, 1, 2
    """)
    for r in range(4):
        A(f"v_cmp_eq_u32 vcc, {r}, v21\ns_nop 1\nv_cndmask_b32 v{MASK+r}, 0, v20, vcc")
    A(f"""
    s_lshl3_add_u32 s33, s30, s31
    s_mul_i32 s46, s33, {REC}
    v_add_u32 v24, s46, v12
    s_lshl_b32 s33, s33, 10
    s_add_u32 s33, s33, {REG_Q}
    v_add_u32 v5, s33, v12
    s_lshl3_add_u32 s33, s30, s32
    s_lshl_b32 s33, s33, 10
    s_add_u32 s33, s33, {REG_Q}
    v_add_u32 v14, s33, v12
    v_lshlrev_b32 v25, 2, v0
    v_lshlrev_b32 v26, 9, v1
    v_lshl_add_u32 v26, v11, 5, v26
    v_lshl_add_u32 v26, v10, 4, v26
    v_lshlrev_b32 v27, 2, v1
    v_lshl_add_u32 v27, v11, 5, v27
    v_add_u32 v27, {L_P}, v27
    v_mov_b32 v28, v12
    s_mul_i32 s33, s32, 384
    s_add_u32 s33, s33, {L_A}
    v_lshl_add_u32 v8, v0, 1, s33
    v_lshl_add_u32 v9, v10, 4, s33
    v_lshrrev_b32 v20, 2, v0
    v_and_b32 v21, 3, v0
    v_and_b32 v22, 3, v20
    v_lshl_add_u32 v22, v10, 3, v22
    v_lshl_add_u32 v23, v1, 6, v20
    v_and_b32 v29, 7, v0
    s_lshr_b32 s33, s32, 1
    s_lshl2_add_u32 s33, s28, s33
    s_mul_i32 s33, s33, {8*REC}
    v_mul_u32_u24 v30, {REC}, v29
    v_add_u32 v30, s33, v30
    v_mov_b32 v7, 0
    s_cmp_eq_u32 s34, 2
    s_cbranch_scc1 ADDR_C
    s_cmp_eq_u32 s34, 3
    s_cbranch_scc1 ADDR_D
    s_and_b32 s42, s32, 1
    s_lshl_b32 s42, s42, 8
    s_add_u32 s33, s33, s42
    s_add_u32 s33, s33, {4*REC}
    v_add_u32 v29, s33, v25
    s_lshl_b32 s33, s28, 19
    s_lshl_b32 s42, s35, 6
    s_add_u32 s33, s33, s42
    v_lshl_add_u32 v6, v23, 10, s33
    v_lshl_add_u32 v6, v21, 4, v6
    v_lshl_add_u64 v[6:7], v[6:7], 0, s[12:13]
    s_mov_b32 s44, 0x4000
    s_lshl_b32 s33, s35, {6 + o["sb"]}
    s_add_u32 s33, s33, s28
    s_lshl_b32 s33, s33, 7
    s_add_u32 s33, s33, {REG_B + 4096}
    v_and_b32 v28, 31, v0
    {"v_lshl_add_u32 v31, v11, 2, s33" if o["sb"] else "v_lshl_add_u32 v31, v28, 2, s33"}
    {"v_and_b32 v20, 1, v10" if o["sb"] else ""}
    {"v_lshl_add_u32 v31, v20, 13, v31" if o["sb"] else ""}
    v_lshrrev_b32 v20, 5, v0
    v_lshl_add_u32 v31, v20, 10, v31
    v_lshlrev_b32 v28, 5, v28
    v_lshlrev_b32 v22, 6, v22
    s_branch ADDR_W
    ADDR_C:
    v_mul_u32_u24 v6, 2752, v23
    v_and_b32 v29, 1, v0
    v_lshl_add_u32 v6, v29, 4, v6
    s_lshl_b32 s33, s35, 5
    v_add_u32 v6, s33, v6
    v_cmp_gt_u32 vcc, 2, v21
    v_mov_b32 v{ML}, s16
    v_mov_b32 v{ML+1}, s17
    v_mov_b32 v29, s18
    v_mov_b32 v31, s19
    v_cndmask_b32 v{ML}, v29, v{ML}, vcc
    v_cndmask_b32 v{ML+1}, v31, v{ML+1}, vcc
    v_lshl_add_u64 v[6:7], v[6:7], 0, v[{ML}:{ML+1}]
    s_mov_b32 s44, {16*2752}
    v_and_b32 v28, 31, v0
    v_lshrrev_b32 v20, 5, v0
    {"v_lshl_add_u32 v20, v1, 2, v10" if o["sb"] else "v_lshl_add_u32 v20, v1, 1, v20"}
    s_and_b32 s33, s28, {o["cpb"] - 1}
    s_lshl_b32 s33, s33, 10
    s_add_u32 s33, s33, {REG_B}
    v_lshl_add_u32 v29, v20, 13, s33
    v_lshl_add_u32 v29, v{11 if o["sb"] else 28}, 2, v29
    v_lshlrev_b32 v28, 5, v28
    s_lshl_b32 s33, s35, {6 + o["sc"]}
    s_add_u32 s33, s33, {REG_C}
    v_lshl_add_u32 v31, v11, 2, s33
    {"v_and_b32 v20, 1, v10" if o["fl"] else ""}
    {"v_lshl_add_u32 v31, v20, 6, v31" if o["fl"] else ""}
    v_lshrrev_b32 v20, {4 + o["fl"]}, v0
    v_lshl_add_u32 v31, v20, {13 + o["sc"]}, v31
    v_lshlrev_b32 v22, 6, v22
    s_branch ADDR_W
    ADDR_D:
    v_lshrrev_b32 v20, 1, v0
    v_lshl_add_u32 v6, v1, 5, v20
    v_and_b32 v29, 1, v0
    v_lshlrev_b32 v6, 10, v6
    v_lshl_add_u32 v6, v29, 4, v6
    s_lshl_b32 s33, s35, 5
    v_add_u32 v6, s33, v6
    v_lshl_add_u64 v[6:7], v[6:7], 0, s[20:21]
    s_mov_b32 s44, 0x40000
    v_and_b32 v20, 15, v20
    v_lshl_add_u32 v31, v20, 1, s33
    s_lshr_b32 s33, s35, {1 - o["sb"]}
    s_lshl_b32 s33, s33, 3
    s_and_b32 s42, s28, {o["cpb"] - 1}
    s_add_u32 s33, s33, s42
    s_and_b32 s42, s35, {1 - o["sb"]}
    s_lshl4_add_u32 s33, s33, s42
    s_lshl_b32 s33, s33, 6
    s_add_u32 s33, s33, {REG_B}
    v_lshl_add_u32 v29, v20, 2, s33
    v_lshlrev_b32 v22, 5, v22
    ADDR_W:
    s_mul_i32 s33, s32, 6144
    s_add_u32 s33, s33, {L_W}
    v_lshl_add_u32 v22, v21, 3, v22
    v_add_u32 v{WS}, s33, v22
    v_add_u32 v{WS+1}, s33, v12
    ADDR_DONE:
    """)
    if o["pf"]:
        h = 1 if o["p2"] else 0
        A("""
        s_lshl3_add_u32 s33, s29, s32
        s_lshl_b32 s42, s28, 8
        s_add_u32 s42, s42, s33
        s_lshl_b32 s42, s42, 11
        v_lshrrev_b32 v20, 2, v0
        v_lshl_add_u32 v218, v20, 7, s42
        s_and_b32 s33, s33, @M@
        v_lshrrev_b32 v20, @3@, v0
        v_lshl_add_u32 v220, v20, @8@, s33
        v_min_u32 v220, 1375, v220
        s_lshl_b32 s42, s28, 7
        v_lshl_add_u32 v220, v220, 10, s42
        v_and_b32 v20, 3, v20
        v_lshlrev_b32 v20, 7, v20
        v_min_u32 v20, 348, v20
        s_mul_i32 s42, s28, 352
        v_add_u32 v20, s42, v20
        v_min_u32 v20, 2748, v20
        v_lshrrev_b32 v219, @5@, v0
        s_lshl_b32 s33, s33, @1@
        v_add_u32 v219, s33, v219
        v_mul_u32_u24 v219, 2752, v219
        v_add_u32 v219, v20, v219
        """.replace("@M@", "127" if h else "255").replace("@3@", str(3 - h)).replace("@8@", str(8 - h)).replace("@5@", str(5 - h)).replace("@1@", str(1 + h)))
    A(f"""
    s_waitcnt lgkmcnt(0)
    s_add_u32 s59, s59, 1
    s_mov_b32 s58, 0xff
    s_and_b32 s33, s59, s58
    v_mov_b32 v{TAGV}, s33
    """)
    if o["warm"] == 1:
        A("s_mov_b64 exec, 0\n@WARMTREE@\nWARM_RET:\ns_mov_b64 exec, -1")
    if o["bal"]:
        A(PAR + "s_cbranch_scc0 BAL1"); wait("xb", False); A(f"BAL1:\ns_waitcnt vmcnt({len(vm) - 1 - vm.index('xb') + 2})"); done[0] = vm.index("xb") + 1
        A(f"v_add_u32 v{WQ+12}, {REG_Q2 - REG_Q}, v14")
    else: wait("xb")
    stamp(2)
    for i in range(4):
        A(f"v_lshlrev_b32 v{BQ+2*i}, 16, v{16+i}\nv_and_b32 v{BQ+2*i+1}, 0xffff0000, v{16+i}")
    A("v_and_b32 v15, 0xffff0000, v15")
    layernorm(BQ, 15, BQ + 8)
    A("s_nop 1")
    pad()
    for j in range(NQ + 1):
        if j < NQ:
            for r in range(4):
                A(f"v_and_b32_dpp v{BQ+4*(j&1)+r}, v15, v{MASK+r} row_newbcast:{j} {FULL}")
        else: A("s_nop 1")
        if j > 0:
            if o["bal"] and j == 2:
                A(PAR + "s_cbranch_scc1 BAL2"); mf(ACC, BQ + 4, WQ + 4, False); mf(248, BQ + 4, WQ + 8, True)
                A(f"s_nop 7\ns_mov_b32 exec_hi, 0\nds_write_b128 v26, v[248:251] offset:{L_O}\nBAL2:")
                continue
            upto(f"q{j-1}", o["depth"] - 1); wait(f"q{j-1}")
            c = "0" if j == 1 else r4(ACC)
            A(f"v_mfma_f32_16x16x32_bf16 {r4(ACC)}, {r4(BQ+4*((j-1)&1))}, {r4(WQ+4*(j-1))}, {c}")
    A(f"s_nop 7\ns_mov_b32 exec_hi, 0\nds_write_b128 v26, {r4(ACC)} offset:{L_Q1 if o['qx'] else L_Q}\ns_mov_b32 exec_hi, -1")
    if o["qx"]:
        if o["bal"]:
            A(f"s_andn2_b32 s33, 1, s28\ns_mul_i32 s42, s32, {REG_Q2 - REG_Q + 0x8000}\nv_add_u32 v5, s42, v5\ns_mul_i32 s42, s32, {L_O - L_Q1}\ns_add_u32 s42, s42, {L_Q1}\nv_lshl_add_u32 v20, v0, 3, s42")
            A("s_waitcnt lgkmcnt(0)\ns_barrier\ns_cmp_gt_u32 s32, s33\ns_cbranch_scc1 NO_QPUB")
        else: A("s_waitcnt lgkmcnt(0)\ns_barrier\ns_cmp_lg_u32 s32, 0\ns_cbranch_scc1 NO_QPUB\nv_lshlrev_b32 v20, 3, v0")
        T0 = BT
        for k in range(8): A(f"ds_read_b64 {r2(T0+2*k)}, v20 offset:{(0 if o['bal'] else L_Q1) + 512*k}")
        A("s_waitcnt lgkmcnt(0)")
        for a, b in ((0, 2), (4, 6), (8, 10), (12, 14), (0, 4), (8, 12), (0, 8)): A(f"v_pk_add_f32 {r2(T0+a)}, {r2(T0+a)}, {r2(T0+b)}")
        A(f"v_mov_b32 v{T0+2}, s59\nv_mov_b32 v{T0+3}, s59\nglobal_store_dwordx4 v5, {r4(T0)}, s[26:27] sc1\nNO_QPUB:")
        if "depth2" in o: o["depth"] = o["depth2"]
        if o["warm"] == 2:
            nxt(o["depth"]); A("s_mov_b64 exec, 0\n@WARMTREE@\nWARM_RET:\ns_mov_b64 exec, -1")
    if o["qx"]:
        upto("g0", o["depth"] - 1); wait("g0")
        check([18], 20)
        A("s_cbranch_vccz Q_OK")
        poll("POLL_Q", ["global_load_dwordx4 v[16:19], v14, s[26:27] sc1"], [18], 20)
        A("Q_OK:")
        if o["bal"]:
            A(PAR + "s_cbranch_scc0 BAL3"); check([WQ + 2], 20); A("s_cbranch_vccz Q2_OK")
            poll("POLL_Q2", [GQ2], [WQ + 2], 20)
            A(f"Q2_OK:\nv_pk_add_f32 v[16:17], v[16:17], {r2(WQ)}\nBAL3:")
        A(f"v_lshlrev_b32 v20, 3, v0\nv_lshl_add_u32 v20, v1, 9, v20\nds_write_b64 v20, v[16:17] offset:{L_Q}")
    nxt(o.get("pre_bar", 2))
    A(f"""
    v_bfe_u32 v21, v0, 2, 2
    v_and_b32 v20, 3, v0
    v_lshl_add_u32 v20, v10, 2, v20
    v_lshlrev_b32 v20, 5, v20
    v_lshl_add_u32 v20, v21, 10, v20
    s_waitcnt lgkmcnt(0)
    s_barrier
    """)
    stamp(3)
    pad()
    for k in range(4): A(f"ds_read_b128 {r4(BQ+4*k)}, v20 offset:{L_Q + 512*(k>>1) + 16*(k&1)}")
    A("s_waitcnt lgkmcnt(0)")
    for i in range(0, 8, 2): A(f"v_pk_add_f32 {r2(BQ+i)}, {r2(BQ+i)}, {r2(BQ+8+i)}")
    for r in (4, 8):
        for i in range(8): A(f"v_add_f32_dpp v{BQ+i}, v{BQ+i}, v{BQ+i} row_ror:{r} {FULL}")
    for i in range(4): A(f"v_cvt_pk_bf16_f32 v{16+i}, v{BQ+2*i}, v{BQ+2*i+1}")
    for jj in range(4):
        A(f"v_cmp_eq_u32 vcc, {jj}, v21\ns_nop 1")
        for r in range(4): A(f"v_cndmask_b32 v{BQ+4*jj+r}, 0, v{16+r}, vcc")
    A("s_nop 1")
    nxt(o["mid"][0])
    DS = [16, 248, 252, ACC]
    for t in range(4):
        for jj in range(4):
            upto(f"k{4*t+jj}", 0); wait(f"k{4*t+jj}")
            c = "0" if jj == 0 else r4(DS[t])
            A(f"v_mfma_f32_16x16x32_bf16 {r4(DS[t])}, {r4(KR+16*t+4*jj)}, {r4(BQ+4*jj)}, {c}")
    nxt(o["mid"][1])
    stamp(4)
    A("s_nop 7")
    S = BQ
    for r in range(4):
        for t in range(4):
            if r == 0: A(f"v_mov_b32_dpp v{S+t}, v{DS[t]} quad_perm:[0,0,0,0] {FULL}")
            else: A(f"v_add_f32_dpp v{S+t}, v{DS[t]+r}, v{S+t} quad_perm:[{r},{r},{r},{r}] {FULL}")
    for t in range(4):
        bf16r(S + t); A(f"v_mul_f32 v{S+t}, 0x3db504f3, v{S+t}"); bf16r(S + t)
    pad()
    A(f"v_max3_f32 v16, v{S}, v{S+1}, v{S+2}\nv_max_f32 v16, v16, v{S+3}")
    wave_allreduce("v_max_f32", 16, 18, (8, 4))
    for t in range(4): A(f"v_sub_f32 v{S+t}, v{S+t}, v16\nv_mul_f32 v{S+t}, 0x3fb8aa3b, v{S+t}\nv_exp_f32 v{S+t}, v{S+t}")
    A(f"s_nop 0\nv_add_f32 v17, v{S}, v{S+1}\nv_add_f32 v18, v{S+2}, v{S+3}\nv_add_f32 v17, v17, v18")
    wave_allreduce("v_add_f32", 17, 18, (8, 4))
    nxt(o["mid"][2])
    A(f"""
    v_lshlrev_b32 v20, 3, v1
    v_and_b32 v21, 7, v0
    v_lshlrev_b32 v21, 3, v21
    s_mov_b64 exec, 1
    ds_write_b64 v20, v[16:17] offset:{L_ML}
    s_mov_b64 exec, -1
    s_waitcnt lgkmcnt(0)
    s_barrier
    ds_read_b64 v[18:19], v21 offset:{L_ML}
    s_waitcnt lgkmcnt(0)
    v_max_f32_dpp v20, v18, v18 row_half_mirror {FULL}
    s_nop 1
    v_max_f32_dpp v20, v20, v20 quad_perm:[1,0,3,2] {FULL}
    s_nop 1
    v_max_f32_dpp v20, v20, v20 quad_perm:[2,3,0,1] {FULL}
    v_sub_f32 v16, v16, v20
    v_sub_f32 v18, v18, v20
    v_mul_f32 v16, 0x3fb8aa3b, v16
    v_mul_f32 v18, 0x3fb8aa3b, v18
    v_exp_f32 v16, v16
    v_exp_f32 v18, v18
    s_nop 0
    v_mul_f32 v21, v18, v19
    """)
    for t in range(4): A(f"v_mul_f32 v{S+t}, v{S+t}, v16\nv_cvt_pk_bf16_f32 v{S+t}, v{S+t}, v{S+t}")
    A(f"""
    v_add_f32_dpp v21, v21, v21 row_half_mirror {FULL}
    s_nop 1
    v_add_f32_dpp v21, v21, v21 quad_perm:[1,0,3,2] {FULL}
    s_nop 1
    v_add_f32_dpp v21, v21, v21 quad_perm:[2,3,0,1] {FULL}
    v_bfi_b32 v20, s58, v{TAGV}, v20
    v_bfi_b32 v21, s58, v{TAGV}, v21
    v_or_b32 v22, s47, v{TAGV}
    v_add_u32 v5, {REG_A2}, v24
    v_mov_b32 v23, v{TAGV}
    s_cmp_lg_u32 s32, 1
    s_cbranch_scc1 NO_ML
    s_mov_b64 exec, 1
    global_store_dwordx4 v24, v[20:23], s[26:27] offset:512 sc1
    s_mov_b64 exec, -1
    NO_ML:
    """)
    nxt(o["mid"][3])
    stamp(5)
    pad()
    for j in range(16):
        for r in range(4):
            A(f"v_and_b32_dpp v{KR+4*j+r}, v{S+(j>>2)}, v{MASK+r} row_newbcast:{4*(j&3)} {FULL}")
    A("s_nop 0")
    pad()
    j0 = 0
    while pend:
        nxt()
        while j0 < 16 and f"v{j0}" in vm and vm.index(f"v{j0}") < done[0]:
            mf(ACC, KR + 4 * j0, VR + 4 * j0, j0 == 0); j0 += 1
    o["depth"] = 99
    for t in late_pf: pref(t)
    stamp(11)
    vm.append("mlg"); A(f"global_load_dwordx4 {r4(ML)}, v30, s[26:27] offset:512 sc1")
    def pv(extra, p2=None, w=False):
        for j in range(j0, 17):
            if w and max(o["bw"], j0) == j:
                for t in range(nb, 4): wload(t); extra += 1
            for t in (1, 2, 3):
                if p2 and max(p2[t // 3], j0) == j:
                    A(f"global_load_dword v221, v{(218, 219, 219, 220)[t]}, s[{(12, 16, 18, 20)[t]}:{(13, 17, 19, 21)[t]}]"); extra += 1
            if j < 16: A(f"s_waitcnt vmcnt({len(vm) - 1 - vm.index(f'v{j}') + extra})"); mf(ACC, KR + 4 * j, VR + 4 * j, j == 0)
    nb = len(o["wb"])
    assert avmask in (0, 2) and (avmask or not nb)
    if avmask or o["p2"]:
        A("s_cmp_eq_u32 s34, 1\ns_cbranch_scc1 PV_W"); pv(0, o["p2"]); A("s_branch PV_DONE\nPV_W:")
    pv(0, None, avmask)
    A("PV_DONE:")
    stamp(6)
    A(f"s_nop 6\ns_mov_b32 exec_hi, 0\nds_write_b128 v26, {r4(ACC)} offset:{L_O}\ns_waitcnt lgkmcnt(0)\ns_barrier")
    A("s_cmp_lg_u32 s32, 0\ns_cbranch_scc1 NO_PUB")
    publish128(L_O, "v24", KR)
    A("NO_PUB:\ns_mov_b32 exec_hi, -1")
    stamp(7)
    A("s_cmp_eq_u32 s34, 0\ns_cbranch_scc1 DONE")
    pad()
    if avmask != 15:
        A(f"s_lshr_b32 s33, {avmask}, s34\ns_bitcmp1_b32 s33, 0\ns_cbranch_scc1 W_ISSUED")
        if o["pw"] == 2:
            assert o["p2"][1] >= o["p2"][0] and avmask
            A(f"s_cmp_eq_u32 s34, 3\ns_cbranch_scc1 W_D\ns_cmp_eq_u32 s32, 0\ns_cbranch_scc1 W_0\ns_waitcnt vmcnt(1)\nW_0:\ns_waitcnt vmcnt({2 + o['local']})\ns_branch W_GO\nW_D:\ns_waitcnt vmcnt(0)\nW_GO:")
        elif o["pw"]: A("s_cmp_eq_u32 s34, 1\ns_cbranch_scc1 W_GO\ns_waitcnt vmcnt(0)\nW_GO:")
        for t in range(4): wload(t)
        A("W_ISSUED:")
    G = VR
    A("s_cmp_eq_u32 s34, 3\ns_cbranch_scc1 ROLE_D")
    def stage_w(n):
        for t in range(n): A(f"ds_write_b128 v{WS+1}, {r4(W1+4*t)} offset:{1024*t}")
    pa = [f"global_load_dword v{G+s}, v29, s[26:27] offset:{REC*(s-4)} sc1" for s in range(8)]
    pb = [f"global_load_dword v{G+s}, v29, s[26:27] offset:{128*s} sc1" for s in range(8)]
    def tr_bc():
        A("s_waitcnt lgkmcnt(0)")
        for ct in range(2):
            for ks in range(2):
                for hf in range(2): A(f"ds_read_b64_tr_b16 {r2(BT+8*ct+4*ks+2*hf)}, v{WS} offset:{2048*ks+256*hf+32*ct}")
    a_via_lds = f"ds_write_b16 v8, v16\ns_waitcnt lgkmcnt(0)\nds_read_b128 {r4(BQ)}, v9\nds_read_b128 {r4(BQ+4)}, v9 offset:64"
    A("s_cmp_eq_u32 s34, 2\ns_cbranch_scc1 ROLE_C")
    A("@WB B\ns_cmp_eq_u32 s32, 0\ns_cbranch_scc1 B_W0\ns_waitcnt vmcnt(0)\nB_W0:")
    A(f"s_waitcnt vmcnt({(1 + o['local']) if o['av'][0] else 0})")
    stage_w(4)
    check(range(ML, ML + 4), 20)
    A("s_cbranch_vccz ML_OK")
    poll("POLL_ML", [f"global_load_dwordx4 {r4(ML)}, v30, s[26:27] offset:512 sc1"], range(ML, ML + 4), 20)
    A("ML_OK:")
    if o["local"]:
        A(f"v_cmp_ne_u32 vcc, s47, v{ML+2}\ns_cbranch_vccnz A_FAR\nv_add_u32 v29, {REG_A2}, v29\nA_FAR:")
    for i, x in enumerate(pa): A(x.replace(f"v{G+i},", f"v{G+8+i},") if o["mr"][0] else x)
    tr_bc()
    A(f"""
    v_max_f32_dpp v20, v{ML}, v{ML} row_half_mirror {FULL}
    s_nop 1
    v_max_f32_dpp v20, v20, v20 quad_perm:[1,0,3,2] {FULL}
    s_nop 1
    v_max_f32_dpp v20, v20, v20 quad_perm:[2,3,0,1] {FULL}
    v_sub_f32 v18, v{ML}, v20
    v_mul_f32 v18, 0x3fb8aa3b, v18
    v_exp_f32 v18, v18
    s_nop 0
    v_mul_f32 v21, v18, v{ML+1}
    s_nop 1
    v_add_f32_dpp v21, v21, v21 row_half_mirror {FULL}
    s_nop 1
    v_add_f32_dpp v21, v21, v21 quad_perm:[1,0,3,2] {FULL}
    s_nop 1
    v_add_f32_dpp v21, v21, v21 quad_perm:[2,3,0,1] {FULL}
    v_rcp_f32 v21, v21
    s_nop 0
    v_mul_f32 v18, v18, v21
    s_nop 1
    """)
    for s in range(8): A(f"v_mov_b32_dpp v{KR+8+s}, v18 row_newbcast:{s} {FULL}")
    if o["mr"][0]: mpoll("POLL_A", pa, G, 20, True)
    else:
        A("s_branch POLL_A_W")
        poll("POLL_A", pa + ["POLL_A_W:"], range(G, G + 8), 20, sl=o["sl"][0])
    stamp(8)
    A(f"@RS B\nv_pk_mul_f32 v[16:17], {r2(KR+8)}, {r2(G)}\nv_pk_mul_f32 v[18:19], {r2(KR+10)}, {r2(G+2)}")
    A(f"v_pk_fma_f32 v[16:17], {r2(KR+12)}, {r2(G+4)}, v[16:17]\nv_pk_fma_f32 v[18:19], {r2(KR+14)}, {r2(G+6)}, v[18:19]")
    A("v_pk_add_f32 v[16:17], v[16:17], v[18:19]\nv_add_f32 v16, v16, v17\nv_cvt_pk_bf16_f32 v16, v16, v16")
    A(a_via_lds)
    pad()
    A("s_waitcnt lgkmcnt(1)"); mf(ACC, BQ, BT, True); mf(ACC + 4, BQ, BT + 8, True)
    A("s_waitcnt lgkmcnt(0)"); mf(ACC, BQ + 4, BT + 4, False); mf(ACC + 4, BQ + 4, BT + 12, False)
    A(f"s_mov_b64 exec, 0xffff\ns_nop 6\nds_write2_b32 v27, v{ACC}, v{ACC+4} offset1:128\ns_mov_b64 exec, -1\ns_waitcnt lgkmcnt(0)\ns_barrier")
    A("s_cmp_lg_u32 s32, 0\ns_cbranch_scc1 DONE")
    colsum2(16, KR, L_P)
    clean(16)
    if o["cpb"] == 1: A("s_mov_b32 exec_hi, 0")
    for i in range((o["cpb"] + 1) // 2): A(f"global_store_dword v31, v16, s[26:27] offset:{2048*i-4096} sc1")
    stamp(9)
    A("s_branch DONE\n@RE")
    def sum_h(k):
        g = G + 8 * k
        for a, b in ((0, 2), (4, 6), (0, 4)): A(f"v_pk_add_f32 {r2(g+a)}, {r2(g+a)}, {r2(g+b)}")
        A(f"v_add_f32 v16, v{g}, v{g+1}")
    def make_h(first=True):
        if first: sum_h(0)
        bf16r(16)
        A("v_add_f32 v16, v15, v16\nv_cvt_pk_bf16_f32 v16, v16, v16")
    A(f"""
    ROLE_C:
    v_lshl_add_u32 v21, v1, 6, v0
    v_lshlrev_b32 v21, 1, v21
    global_load_short_d16_hi v15, v21, s[4:5]
    v_mov_b32 v{ONES}, 0x3f803f80
    v_mov_b32 v{ONES+1}, 0x3f803f80
    v_mov_b32 v{ONES+2}, 0x3f803f80
    v_mov_b32 v{ONES+3}, 0x3f803f80
    v_mov_b32 v13, 0
    v_add_u32 v14, {L_CS - L_P}, v27
    s_and_b32 s43, s59, 0xffff
    """)
    for i in range(1, o["cpc"] // (4 >> o["fl"])): A(f"v_add_u32 v{VR+48+i}, {(0x8000 << o['sc'] >> o['fl'])*i}, v31")
    A("@WB C\ns_waitcnt vmcnt(0)\nv_and_b32 v15, 0xffff0000, v15")
    if o["ce"]:
        for x in pb: A(x)
    stage_w(4); tr_bc()
    pad()
    A("s_waitcnt lgkmcnt(0)")
    for ks in range(2):
        for ct in range(2): mf(ACC + 4 * ct, ONES, BT + 8 * ct + 4 * ks, ks == 0)
    A(f"s_mov_b64 exec, 0xffff\ns_nop 6\nds_write2_b32 v14, v{ACC}, v{ACC+4} offset1:128\ns_mov_b64 exec, -1")
    if o["pre"]:
        A(f"""
        s_cmp_lg_u32 s32, 0
        s_cbranch_scc1 PRE_OK
        s_and_b32 s33, s35, 15
        s_lshl_b32 s33, s33, 3
        s_and_b32 s42, s28, {o["cpb"] - 1}
        s_add_u32 s33, s33, s42
        s_lshl_b32 s33, s33, 10
        s_add_u32 s33, s33, {REG_B}
        v_lshl_add_u32 v21, v0, 7, s33
        s_mov_b64 exec, 0xff
        PRE:
        global_load_dword v22, v21, s[26:27] sc1
        s_add_u32 s41, s41, 1
        s_cmp_gt_u32 s41, 0x40000
        s_cbranch_scc1 DONE
        s_waitcnt vmcnt(0)
        v_and_b32 v22, 0xff, v22
        v_cmp_eq_u32 vcc, v22, v{TAGV}
        s_bcnt1_i32_b64 s33, vcc
        s_cmp_lt_u32 s33, {o["pre"]}
        s_cbranch_scc1 PRE
        s_mov_b64 exec, -1
        PRE_OK:
        """)
    if not o["ce"]:
        A("s_waitcnt lgkmcnt(0)\ns_barrier")
        colsum2(14, KR, L_CS)
    if o["nc"]:
        ppoll("POLL_B", o["nc"], lambda k: [x.replace(f"v{G+i},", f"v{G+8*k+i},") for i, x in enumerate(pb)], lambda k: range(G + 8 * k, G + 8 * k + 8), 22, sum_h, skip=o["ce"], sl=o["sl"][1])
    elif o["ce"]: A("s_branch POLL_B_W"); poll("POLL_B", pb + ["POLL_B_W:"], range(G, G + 8), 22)
    elif o["mr"][1]: mpoll("POLL_B", pb, G, 22)
    else: poll("POLL_B", pb, range(G, G + 8), 22, sl=o["sl"][1])
    stamp(8)
    A("@RS C")
    make_h(not o["nc"])
    A(a_via_lds)
    A("s_waitcnt lgkmcnt(1)"); mf(ACC, BQ, BT, True); mf(ACC + 4, BQ, BT + 8, True); mf(KR, BQ, ONES, True); mf(KR + 4, BQ, BQ, True)
    A("s_waitcnt lgkmcnt(0)"); mf(ACC, BQ + 4, BT + 4, False); mf(ACC + 4, BQ + 4, BT + 12, False); mf(KR, BQ + 4, ONES, False); mf(KR + 4, BQ + 4, BQ + 4, False)
    A(f"s_mov_b64 exec, 0xffff\ns_nop 4\nds_write2_b32 v27, v{ACC}, v{ACC+4} offset1:128\ns_mov_b64 exec, 1\nds_write_b32 v27, v{KR} offset:1024\nds_write_b32 v27, v{KR+4} offset:1056")
    A("s_mov_b64 exec, -1\ns_waitcnt lgkmcnt(0)\ns_barrier")
    stamp(12)
    A("s_cmp_lg_u32 s32, 0\ns_cbranch_scc1 DONE")
    pad()
    colsum2(16, KR, L_P, [(17, KR + 8, "v13", L_P + 1024), (18, KR + 16, "v13", L_P + 1056)] + ([(14, KR + 24, "v28", L_CS)] if o["ce"] else []))
    A("v_mul_f32 v17, 0x3b000000, v17\nv_mul_f32 v18, 0x3b000000, v18\nv_fma_f32 v18, -v17, v17, v18\nv_max_f32 v18, 0, v18")
    A("v_cvt_pk_bf16_f32 v18, v17, v18\nv_lshlrev_b32 v17, 16, v18\nv_and_b32 v18, 0xffff0000, v18\nv_add_f32 v18, 0x3727c5ac, v18")
    bf16r(18)
    A("v_sqrt_f32 v18, v18\nv_fma_f32 v16, -v17, v14, v16")
    bf16r(18)
    A("v_rcp_f32 v18, v18\ns_nop 0\nv_mul_f32 v16, v16, v18")
    bf16r(16)
    A("v_mov_b32 v17, v16\ns_nop 1\nv_permlane16_swap_b32 v16, v17\nv_max_f32 v16, 0, v16\nv_mul_f32 v16, v16, v17\nv_cvt_pk_bf16_f32 v16, v16, v16")
    A("v_lshl_or_b32 v16, v16, 16, s43")
    if o["cpc"] < 4: A("s_mov_b32 exec_hi, 0")
    if o["cpc"] < 2: A("s_mov_b32 exec_lo, 0xffff")
    A("global_store_dword v31, v16, s[26:27] sc1")
    for i in range(1, o["cpc"] // (4 >> o["fl"])): A(f"global_store_dword v{VR+48+i}, v16, s[26:27] sc1")
    stamp(9)
    A("s_branch DONE\n@RE")
    if "al" in o: A(".p2align 8" + "\ns_endpgm" * (o["al"] // 4))
    A("ROLE_D:")
    wload(4)
    A("s_cmp_ge_u32 s32, 3\ns_cbranch_scc1 D_5"); wload(5); A("D_5:")
    A(f"""
    global_load_short_d16_hi v15, v31, s[4:5]
    v_lshrrev_b32 v13, 3, v0
    v_lshl_add_u32 v13, v13, 3, v1
    v_lshlrev_b32 v13, {7 + o["sc"]}, v13
    v_and_b32 v14, 0x70, v12
    {"v_and_b32 v20, 0x40, v12" if o["sc"] else ""}
    {"v_add_u32 v14, v14, v20" if o["sc"] else ""}
    v_add3_u32 v13, v13, v14, s{43}
    s_mul_i32 s33, s32, 384
    s_add_u32 s33, s33, {L_A}
    v_lshl_add_u32 v8, v0, 3, s33
    s_and_b32 s33, s59, 0xffff
    v_mov_b32 v14, s33
    s_mov_b32 s46, 0xffff
    s_mov_b32 s42, 0x07060302
    s_cmp_lt_u32 s32, 3
    s_cselect_b32 s47, 0xffff, 0xff
    @WB D
    s_waitcnt vmcnt(0)
    v_and_b32 v15, 0xffff0000, v15
    """.replace("v_add3_u32 v13, v13, v14, s43", f"s_lshr_b32 s43, s35, {6 - o['cpc'].bit_length()}\ns_lshl_b32 s43, s43, {13 + o['sc']}\ns_add_u32 s43, s43, {REG_C}\nv_add3_u32 v13, v13, v14, s43").replace("s_cselect_b32 s47, 0xffff, 0xff", "s_cselect_b32 s47, s46, s58"))
    stage_w(6)
    A("s_waitcnt lgkmcnt(0)")
    for i in range(6):
        for hf in range(2): A(f"ds_read_b64_tr_b16 {r2(BT+4*i+2*hf)}, v{WS} offset:{1024*i+128*hf}")
    pad()
    A("s_cmp_lg_u32 s32, 0\ns_cbranch_scc1 D_NOH")
    if o["mr"][1]: mpoll("POLL_B2", pb, G, 22)
    else: poll("POLL_B2", pb, range(G, G + 8), 22)
    make_h()
    A("v_and_b32 v15, 0xffff0000, v16\nD_NOH:")
    if o["gate"]: A("s_barrier")
    if o["gate"] > 1: A(f"s_sleep {o['gate']}")
    stamp(8)
    A("s_mov_b32 exec_hi, s47")
    permc = lambda k: A(f"v_perm_b32 v16, v{G+4*k+1}, v{G+4*k}, s42\nv_perm_b32 v17, v{G+4*k+3}, v{G+4*k+2}, s42")
    ldc = lambda k: [f"global_load_dwordx4 {r4(G+4*k)}, v13, s[26:27] sc1"]
    if o["nd"]: ppoll("POLL_C", o["nd"], ldc, lambda k: range(G + 4 * k, G + 4 * k + 4), 22, permc, sl=o["sl"][2], mask="s46", tag=14)
    else: poll("POLL_C", ldc(0), range(G, G + 4), 22, mask="s46", tag=14, sl=o["sl"][2]); permc(0)
    stamp(9)
    A(f"@RS D\nds_write_b64 v8, v[16:17]\ns_mov_b32 exec_hi, -1\ns_waitcnt lgkmcnt(0)")
    for i in range(6): A(f"ds_read_b128 {r4(KR+4*i)}, v9 offset:{64*i}")
    d2 = o.get("d2", 0)
    for i in range(5):
        A(f"s_waitcnt lgkmcnt({5-i})"); mf(ACC + 4 * (i & d2), KR + 4 * i, BT + 4 * i, i <= d2)
    A("s_cmp_ge_u32 s32, 3\ns_cbranch_scc1 D_6\ns_waitcnt lgkmcnt(0)"); mf(ACC + 4 * d2, KR + 20, BT + 20, False); A("D_6:")
    A("s_mov_b64 exec, 0xffff\ns_nop 6")
    if d2: A(f"v_add_f32 v{ACC}, v{ACC}, v{ACC+4}")
    A(f"ds_write_b32 v27, v{ACC}\ns_mov_b64 exec, -1\ns_waitcnt lgkmcnt(0)\ns_barrier")
    A("s_cmp_lg_u32 s32, 0\ns_cbranch_scc1 DONE")
    colsum(16, KR, L_P)
    bf16r(16)
    A("v_add_f32 v16, v16, v15\nv_cvt_pk_bf16_f32 v16, v16, v16\ns_mov_b64 exec, 0x55555555")
    A("global_store_short v31, v16, s[22:23]\n@RE")
    A(f"s_cmp_lg_u32 s35, 0\ns_cbranch_scc1 DONE\ns_mov_b64 exec, 1\nv_mov_b32 v20, {EPOCH}\nv_mov_b32 v21, s59\nglobal_store_dword v20, v21, s[26:27]")
    A("DONE:")
    if o["nd"] or o["nc"] or o["pf"]: A("s_waitcnt vmcnt(0)")
    if o["stamps"]:
        A("s_waitcnt vmcnt(0)")
        stamp(10)
        A(f"s_mov_b32 s88, s41\ns_mov_b32 s90, s34\ns_mov_b64 exec, 1\ns_lshl3_add_u32 s33, s2, s32\ns_lshl_b32 s33, s33, 6\ns_add_u32 s33, s33, {DIAG}\nv_mov_b32 v20, s33\ns_waitcnt lgkmcnt(0)")
        for i in range(16): A(f"v_mov_b32 v21, s{60+2*i}\nglobal_store_dword v20, v21, s[26:27] offset:{4*i}")
    if o.get("dbg"):
        A("s_cmp_lg_u32 s2, 224\ns_cbranch_scc1 EXIT\ns_cmp_lg_u32 s32, 0\ns_cbranch_scc1 EXIT\ns_memtime s[94:95]\ns_waitcnt lgkmcnt(0)\nv_mov_b32 v20, 0")
        for i in range(1, 11): A(f"s_sub_u32 s33, s{60+2*i}, s60\nv_mov_b32 v21, s33\nglobal_store_dword v20, v21, s[24:25] offset:{4*i}")
        A("s_sub_u32 s33, s94, s92\nv_mov_b32 v21, s33\nglobal_store_dword v20, v21, s[24:25]")
    if o.get("amp"):
        A(f"s_sub_u32 s33, s{60+2*o['amp']}, s60\ns_min_u32 s33, s33, 5000\ns_mul_i32 s33, s33, 20\nAMP:\ns_memrealtime s[94:95]\ns_waitcnt lgkmcnt(0)\ns_sub_u32 s42, s94, s80\ns_cmp_lt_u32 s42, s33\ns_cbranch_scc1 AMP")
    A("EXIT:\ns_endpgm")
    L.append(f""".section .rodata,"a"
.p2align 6
.amdhsa_kernel {KN}
  .amdhsa_next_free_vgpr 256
  .amdhsa_next_free_sgpr 96
  .amdhsa_accum_offset 256
  .amdhsa_group_segment_fixed_size 0
  .amdhsa_kernarg_size 96
  .amdhsa_user_sgpr_count 2
  .amdhsa_user_sgpr_kernarg_segment_ptr 1
  .amdhsa_system_sgpr_workgroup_id_x 1
.end_amdhsa_kernel""")
    L2, reg, cnt, k = [], None, 0, 0
    for x in L:
        t = x.strip()
        if t.startswith("@WB"):
            if o["tw"]: L2 += ["    s_mov_b64 exec, 0", f"    s_branch TW{t[-1]}0", f"TW{t[-1]}R:", "    s_mov_b64 exec, -1"]
        elif t.startswith("@RS"): reg, cnt, k = t[-1], o["tw"] // 2, 0
        elif t == "@RE":
            if o["tw"]: L2 += [f"TW{reg}{k}:", f"    {'s_cbranch_execz' if reg == 'D' else 's_branch'} TW{reg}R"]
            reg = None
        else:
            if reg and o["tw"] and not t.endswith(":"):
                cnt += 1
                if cnt >= o["tw"]:
                    L2 += [f"TW{reg}{k}:", f"    s_cbranch_execz TW{reg}{k+1}"]; cnt = 0; k += 1
            L2.append(x)
    L = L2
    txt = "\n".join(L) + "\n"
    txt = txt.replace("@ATOM@", "s_nop 0" if o.get("noatom") else "global_atomic_add v21, v20, s[24:25] sc1")
    if o.get("noatom"): txt = txt.replace("v_cmp_gt_u32 vcc, 32, v23", "v_cmp_gt_u32 vcc, 0, v23")
    if o["warm"]:
        n = npad[0]
        sel = o.get("warm_sel") or [round(i * (n - 1) / 7) for i in range(8)]
        tree = "\n".join(f"    s_cmp_eq_u32 s32, {w}\n    s_cbranch_scc1 PAD{p}" for w, p in enumerate(sel))
        txt = txt.replace("    @WARMTREE@", tree)
    return txt

if __name__ == "__main__":
    out = sys.argv[1]
    kw = {}
    for a in sys.argv[2:]:
        k, v = a.split("=")
        try: v = json.loads(v)
        except Exception: pass
        kw[k] = v
    open(out, "w").write(gen(**kw))
```
